```python
import torch

def _softmax(x, axis=-1):
    return torch.softmax(x, dim=axis)
def _gelu(x):
    return torch.nn.functional.gelu(x, approximate="tanh")
def _silu(x):
    return torch.nn.functional.silu(x)
def _sigmoid(x):
    return torch.sigmoid(x)
def _layernorm(x, axis=-1, eps=1e-5):
    m = x.mean(dim=axis, keepdim=True)
    v = x.var(dim=axis, keepdim=True, unbiased=False)
    return (x - m) / torch.sqrt(v + eps)
def _scatter_add(tgt, idx, src, axis=0):
    return tgt.clone().index_add_(axis, idx, src)
def _segment_sum(src, seg, n):
    out = torch.zeros((n,) + src.shape[1:], dtype=src.dtype)
    return out.index_add_(0, seg, src)
def _pad(x, pw):
    flat = tuple(v for pair in reversed(pw) for v in pair)
    return torch.nn.functional.pad(x, flat)

kernel_name = 'concat_heads__mha_block_cached__gqa_block_cached__near_ridge'

def setup_inputs():

    _w = (lambda a: (lambda t: t.to(torch.bfloat16) if t.is_floating_point() else t)(torch.as_tensor(a)))
    def _A_setup():
        B, Sq, D = 8, 144, 512
        H, Sk, Dh = 32, 512, 128
        return {
            "x": _w((lambda *s: torch.randn(*s, dtype=torch.bfloat16) * 0.8)(B, Sq, D)),
            "k_cache": _w((lambda *s: torch.randn(*s, dtype=torch.bfloat16) * 0.8)(B, H, Sk, Dh)),
            "v_cache": _w((lambda *s: torch.randn(*s, dtype=torch.bfloat16) * 0.05)(B, H, Sk, Dh)),
            "wq": _w((lambda *s: torch.randn(*s, dtype=torch.bfloat16) * 0.8)(D, H * Dh) * (D ** -0.5)),
            "wo": _w((lambda *s: torch.randn(*s, dtype=torch.bfloat16) * 0.05)(H * Dh, D) * ((H * Dh) ** -0.5)),
        }
    _A_in = _A_setup()

    def _B_setup():
        B, Sq, D = 8, 144, 512
        Hq, Hkv, Sk, Dh = 32, 32, 512, 128
        assert Hq % Hkv == 0, (Hq, Hkv)
        return {
            "x": _w((lambda *s: torch.randn(*s, dtype=torch.bfloat16) * 0.8)(B, Sq, D)),
            "k_cache": _w((lambda *s: torch.randn(*s, dtype=torch.bfloat16) * 0.8)(B, Hkv, Sk, Dh)),
            "v_cache": _w((lambda *s: torch.randn(*s, dtype=torch.bfloat16) * 0.05)(B, Hkv, Sk, Dh)),
            "wq": _w((lambda *s: torch.randn(*s, dtype=torch.bfloat16) * 0.8)(D, Hq * Dh) * (D ** -0.5)),
            "wo": _w((lambda *s: torch.randn(*s, dtype=torch.bfloat16) * 0.05)(Hq * Dh, D) * ((Hq * Dh) ** -0.5)),
        }
    _B_in = _B_setup()

    return {
        "A_x": _A_in["x"],
        "A_k_cache": _A_in["k_cache"],
        "A_v_cache": _A_in["v_cache"],
        "A_wq": _A_in["wq"],
        "A_wo": _A_in["wo"],
        "B_x": _B_in["x"],
        "B_k_cache": _B_in["k_cache"],
        "B_v_cache": _B_in["v_cache"],
        "B_wq": _B_in["wq"],
        "B_wo": _B_in["wo"],
    }

def reference(A_x, A_k_cache, A_v_cache, A_wq, A_wo, B_x, B_k_cache, B_v_cache, B_wq, B_wo):
    def _A_ref(x, k_cache, v_cache, wq, wo):
        B, Sq, D = x.shape
        H, Dh = 32, 128
        q = (lambda x, *d: x.permute(*d))((x @ wq).reshape(B, Sq, H, Dh), 0, 2, 1, 3)
        scores = torch.einsum("bhqd,bhkd->bhqk", q, k_cache) * (Dh ** -0.5)
        p = _softmax(scores, axis=-1)
        o = torch.einsum("bhqk,bhkd->bhqd", p, v_cache)
        return (lambda x, *d: x.permute(*d))(o, 0, 2, 1, 3).reshape(B, Sq, H * Dh) @ wo

    def _B_ref(x, k_cache, v_cache, wq, wo):
        B, Sq, D = x.shape
        Hq, Dh = 32, 128
        Hkv = k_cache.shape[1]
        rep = Hq // Hkv
        q = (lambda x, *d: x.permute(*d))((x @ wq).reshape(B, Sq, Hq, Dh), 0, 2, 1, 3)
        k = (lambda x, n, axis: torch.repeat_interleave(x, n, dim=axis))(k_cache, rep, axis=1)
        v = (lambda x, n, axis: torch.repeat_interleave(x, n, dim=axis))(v_cache, rep, axis=1)
        scores = torch.einsum("bhqd,bhkd->bhqk", q, k) * (Dh ** -0.5)
        p = _softmax(scores, axis=-1)
        o = torch.einsum("bhqk,bhkd->bhqd", p, v)
        return (lambda x, *d: x.permute(*d))(o, 0, 2, 1, 3).reshape(B, Sq, Hq * Dh) @ wo

    a = _A_ref(A_x, A_k_cache, A_v_cache, A_wq, A_wo)
    b = _B_ref(B_x, B_k_cache, B_v_cache, B_wq, B_wo)
    return torch.concatenate([a, b], axis=-1)
```

```python
import copy

def vr(base, n=1):
    return f"v{base}" if n == 1 else f"v[{base}:{base+n-1}]"
def sr(base, n=1):
    return f"s{base}" if n == 1 else f"s[{base}:{base+n-1}]"
def R(base, n=1):
    return list(range(base, base + n))

class State:
    def __init__(self):
        self.t = 0
        self.valu_w = {}
        self.trans_w = {}
        self.mfma_w = {}
        self.mfma_c = {}
        self.store_r = {}
        self.sg_valu_w = {}
        self.m0_w = -100
        self.exec_valu_w = -100
        self.lgkm = []
        self.vm = []

class Em:
    def __init__(self):
        self.lines = []
        self.s = State()
        self.nlabel = 0
        self.cnt = {}
        self.cold = []
    def raw(self, txt, ws=1, kind=None):
        self.lines.append("    " + txt)
        self.s.t += ws
        k = kind or txt.split()[0]
        self.cnt[k] = self.cnt.get(k, 0) + 1
    def comment(self, txt):
        self.lines.append("    ; " + txt)
    def label(self, name):
        self.lines.append(name + ":")
    def newlabel(self, p="L"):
        self.nlabel += 1
        return f"{p}_{self.nlabel}"
    def nop(self, n):
        while n > 0:
            k = min(n, 16)
            self.raw(f"s_nop {k-1}", ws=k)
            n -= k
    def _pad(self, need):
        if need > 0:
            self.nop(need)
    def _wait_regs(self, regs):
        regs = set(regs)
        s = self.s
        li = -1
        for i, d in enumerate(s.lgkm):
            if d & regs:
                li = i
        vi = -1
        for i, (tag, d) in enumerate(s.vm):
            if d & regs:
                vi = i
        self._wait(vi, li)
    def _wait(self, vi, li):
        s = self.s
        parts = []
        if vi >= 0:
            n = min(len(s.vm) - 1 - vi, 63)
            parts.append(f"vmcnt({n})")
            s.vm = s.vm[len(s.vm) - n:] if n > 0 else []
        if li >= 0:
            n = min(len(s.lgkm) - 1 - li, 15)
            parts.append(f"lgkmcnt({n})")
            s.lgkm = s.lgkm[len(s.lgkm) - n:] if n > 0 else []
        if parts:
            self.raw("s_waitcnt " + " ".join(parts))
    def wait_vm_tag(self, tag, also_lgkm0=False):
        s = self.s
        vi = -1
        for i, (tg, d) in enumerate(s.vm):
            if tg == tag:
                vi = i
        li = len(s.lgkm) - 1 if also_lgkm0 else -1
        self._wait(vi, li)
    def wait_all(self, vm=True, lgkm=True, force=False):
        s = self.s
        if force:
            self.raw("s_waitcnt " + " ".join((["vmcnt(0)"] if vm else []) + (["lgkmcnt(0)"] if lgkm else [])))
            if vm: s.vm = []
            if lgkm: s.lgkm = []
            return
        self._wait(len(s.vm) - 1 if vm else -1, len(s.lgkm) - 1 if lgkm else -1)
    def _haz(self, kind, reads, writes, sreads=(), mfma_c=None, mfma_d=None):
        s = self.s
        need = 0
        def req(tw, n):
            nonlocal need
            need = max(need, n - (s.t - tw))
        for r in reads:
            if r in s.mfma_w:
                req(s.mfma_w[r][0], 8)
            if kind in ("valu", "permlane", "readlane") and r in s.trans_w:
                req(s.trans_w[r], 1)
            if kind == "permlane" and r in s.valu_w: req(s.valu_w[r], 2)
            if kind == "readlane" and r in s.valu_w: req(s.valu_w[r], 1)
        for r in writes:
            if kind != "mfma":
                if r in s.mfma_w: req(s.mfma_w[r][0], 8)
            if kind in ("valu", "trans", "permlane"):
                if r in s.mfma_c: req(s.mfma_c[r], 3)
                if r in s.store_r: req(s.store_r[r], 2)
            else:
                if r in s.store_r: req(s.store_r[r], 1)
        for k in sreads:
            if k in s.sg_valu_w:
                if kind in ("valu", "trans"): req(s.sg_valu_w[k], 2)
                elif kind == "vmem": req(s.sg_valu_w[k], 5)
                elif kind == "readlane": req(s.sg_valu_w[k], 4)
                elif kind == "salu": req(s.sg_valu_w[k], 1)
        return need
    def _mark(self, kind, reads, writes, swrites=(), mfma_c=None):
        s = self.s
        t = s.t
        for r in writes:
            s.valu_w.pop(r, None); s.trans_w.pop(r, None); s.mfma_w.pop(r, None)
            if kind in ("valu", "permlane"): s.valu_w[r] = t
            elif kind == "trans": s.valu_w[r] = t; s.trans_w[r] = t
            elif kind == "mfma": s.mfma_w[r] = (t, writes[0])
        if mfma_c:
            for r in mfma_c: s.mfma_c[r] = t
        for k in swrites:
            s.sg_valu_w[k] = t
    def valu(self, txt, w=(), r=(), kind="valu", sr_=(), sw=()):
        w = list(w); r = list(r)
        self._wait_regs(w + r)
        self._pad(self._haz(kind, r, w, sreads=sr_))
        self.raw(txt)
        self._mark(kind, r, w, swrites=sw)
    def trans(self, txt, w=(), r=()):
        self.valu(txt, w, r, kind="trans")
    def salu(self, txt, sr_=(), m0=False):
        self._pad(self._haz("salu", [], [], sreads=sr_))
        self.raw(txt)
        if m0: self.s.m0_w = self.s.t
    def mfma(self, d, a, b, c):
        D = R(d, 4); A = R(a, 4); B = R(b, 4); C = R(c, 4) if c is not None else []
        self._wait_regs(D + A + B + C)
        s = self.s
        need = 0
        for r in A + B:
            if r in s.mfma_w: need = max(need, 8 - (s.t - s.mfma_w[r][0]))
            if r in s.valu_w: need = max(need, 2 - (s.t - s.valu_w[r]))
        for r in C:
            if r in s.mfma_w and s.mfma_w[r][1] != c: need = max(need, 6 - (s.t - s.mfma_w[r][0]))
            if r in s.valu_w: need = max(need, 2 - (s.t - s.valu_w[r]))
        for r in D:
            if r in s.store_r: need = max(need, 2 - (s.t - s.store_r[r]))
            if r in s.mfma_w and c != d: need = max(need, 6 - (s.t - s.mfma_w[r][0]))
        self._pad(need)
        cs = vr(c, 4) if c is not None else "0"
        self.raw(f"v_mfma_f32_16x16x32_bf16 {vr(d,4)}, {vr(a,4)}, {vr(b,4)}, {cs}", kind="mfma")
        self._mark("mfma", A + B + C, D, mfma_c=C)
    def ds_read(self, op, d, n, addr, off=0):
        D = R(d, n)
        self._wait_regs(D + [addr])
        self._pad(self._haz("ds", [addr], D))
        o = f" offset:{off}" if off else ""
        self.raw(f"{op} {vr(d,n)}, {vr(addr)}{o}")
        self._mark("ds", [addr], D)
        self.s.lgkm.append(frozenset(D))
    def ds_write(self, op, addr, src, n, off=0):
        S = R(src, n)
        self._wait_regs(S + [addr])
        self._pad(self._haz("ds", S + [addr], []))
        o = f" offset:{off}" if off else ""
        self.raw(f"{op} {vr(addr)}, {vr(src,n)}{o}")
        self.s.lgkm.append(frozenset())
    def buf_load(self, d, n, voff, srd, soff, off=0, flags="", tag=None):
        D = R(d, n)
        self._wait_regs(D + [voff])
        self._pad(self._haz("vmem", [voff], D, sreads=[soff] if isinstance(soff, int) else []))
        op = {1: "buffer_load_dword", 2: "buffer_load_dwordx2", 4: "buffer_load_dwordx4"}[n]
        so = sr(soff) if isinstance(soff, int) else soff
        o = f" offset:{off}" if off else ""
        self.raw(f"{op} {vr(d,n)}, {vr(voff)}, {sr(srd,4)}, {so} offen{o}{flags}")
        self._mark("vmem", [voff], D)
        self.s.vm.append((tag, frozenset(D)))
    def dma(self, voff, srd, soff, off=0, flags="", tag=None):
        self._wait_regs([voff])
        need = self._haz("vmem", [voff], [], sreads=[soff] if isinstance(soff, int) else [])
        need = max(need, 1 - (self.s.t - self.s.m0_w))
        self._pad(need)
        so = sr(soff) if isinstance(soff, int) else soff
        o = f" offset:{off}" if off else ""
        self.raw(f"buffer_load_dwordx4 {vr(voff)}, {sr(srd,4)}, {so} offen{o}{flags} lds", kind="dma")
        self.s.vm.append((tag, frozenset()))
    def buf_store(self, src, n, voff, srd, soff, off=0, flags="", tag=None):
        S = R(src, n)
        self._wait_regs(S + [voff])
        self._pad(self._haz("vmem", S + [voff], [], sreads=[soff] if isinstance(soff, int) else []))
        op = {1: "buffer_store_dword", 2: "buffer_store_dwordx2", 4: "buffer_store_dwordx4"}[n]
        so = sr(soff) if isinstance(soff, int) else soff
        o = f" offset:{off}" if off else ""
        self.raw(f"{op} {vr(src,n)}, {vr(voff)}, {sr(srd,4)}, {so} offen{o}{flags}")
        if n >= 3:
            for r in S: self.s.store_r[r] = self.s.t
        self.s.vm.append((tag, frozenset()))
    def barrier(self):
        self.raw("s_barrier")
    def snapshot(self):
        return copy.deepcopy(self.s)
    def restore(self, st):
        self.s = copy.deepcopy(st)
    def merge(self, a, b):
        T = max(a.t, b.t)
        m = State(); m.t = T
        def md(da, db, tup=False):
            out = {}
            for k in set(da) | set(db):
                ages = []
                val = None
                for d, st in ((da, a), (db, b)):
                    if k in d:
                        tt = d[k][0] if tup else d[k]
                        ages.append(st.t - tt)
                        val = d[k]
                age = min(ages)
                if tup:
                    bases = {d[k][1] for d in (da, db) if k in d}
                    out[k] = (T - age, val[1] if len(bases) == 1 else -1)
                else:
                    out[k] = T - age
            return out
        m.valu_w = md(a.valu_w, b.valu_w); m.trans_w = md(a.trans_w, b.trans_w)
        m.mfma_w = md(a.mfma_w, b.mfma_w, True); m.mfma_c = md(a.mfma_c, b.mfma_c)
        m.store_r = md(a.store_r, b.store_r); m.sg_valu_w = md(a.sg_valu_w, b.sg_valu_w)
        m.m0_w = T - min(a.t - a.m0_w, b.t - b.m0_w)
        la, lb = a.lgkm, b.lgkm
        lo, sh = (la, lb) if len(la) >= len(lb) else (lb, la)
        assert lo[len(lo) - len(sh):] == sh, ("lgkm mismatch", la, lb)
        m.lgkm = list(lo)
        va, vb = a.vm, b.vm
        lo, sh = (va, vb) if len(va) >= len(vb) else (vb, va)
        assert lo[len(lo) - len(sh):] == sh, ("vm mismatch", va, vb)
        m.vm = list(lo)
        self.s = m
    def variant(self, cond_cmp, taken_fn, fall_fn):
        lab = self.newlabel("VAR")
        self.salu(cond_cmp)
        self.raw(f"s_cbranch_scc1 {lab}_t")
        st = self.snapshot()
        fall_fn()
        sa = self.snapshot()
        self.label(f"{lab}_j")
        main = self.lines
        self.lines = self.cold
        self.restore(st)
        self.label(f"{lab}_t")
        taken_fn()
        self.raw(f"s_branch {lab}_j")
        sb = self.snapshot()
        self.lines = main
        self.merge(sa, sb)
    def text(self):
        return "\n".join(self.lines + self.cold) + "\n"
```

```python
import sys, math, struct
sys.path.insert(0, "gen")
from em import Em, vr, sr, R

NAME = "concat_heads__mha_block_cached__gqa_block_cached__near_ridge"
def f32(x):
    return struct.unpack("<I", struct.pack("<f", x))[0]
CSCALE = math.log2(math.e) / math.sqrt(128.0)

VREG_V = 0
VREG_K = 40960
HS = 8192
KVSLOT = [3, 4, 2, 0, 1]
WS_O = 0
WS_P = 2 * 1152 * 4096 * 2

class Alloc:
    def __init__(self, start=0, limit=256):
        self.n = start; self.limit = limit
    def get(self, n, align=1):
        self.n = (self.n + align - 1) // align * align
        b = self.n; self.n += n
        assert self.n <= self.limit, ("out of regs", self.n)
        return b

def emit_segment(e, mf, pinned, spread):
    for c in pinned.get(-1, []): c()
    W = sum(w for _, w in spread)
    nM = len(mf)
    k = 0; cum = 0.0
    for i, m in enumerate(mf):
        m()
        for c in pinned.get(i, []): c()
        tgt = W * (i + 1) / nM
        while k < len(spread) and cum + spread[k][1] * 0.5 <= tgt:
            spread[k][0](); cum += spread[k][1]; k += 1
    while k < len(spread):
        spread[k][0](); k += 1

class Stream:
    def __init__(self, e, FR):
        self.e = e; self.FR = FR
        self.frags = []
        self.bars = {}
    def slot(self, f):
        return self.FR + 4 * (f % 8)
    def add(self, reads):
        self.frags.append(reads); return len(self.frags) - 1
    def read(self, f):
        for (op, ro, n, addr, imm) in self.frags[f]:
            self.e.ds_read(op, self.slot(f) + ro, n, addr, imm)
    def start(self):
        n = 0
        while n < 8 and n < len(self.frags) and not (n > 0 and n in self.bars):
            self.read(n); n += 1
        assert n == 8 or n == len(self.frags)
    def after(self, f):
        e = self.e
        out = []; post = []
        N = len(self.frags)
        F = f + 6
        if F in self.bars and F < N:
            tag, pst = self.bars[F]
            def bar(tag=tag):
                e.wait_vm_tag(tag, also_lgkm0=True)
                e.barrier()
            out.append(bar)
            for x in (F, F + 1, F + 2):
                if x < N: out.append(lambda x=x: self.read(x))
            post = pst
        else:
            nf = f + 8
            if nf < N and not (nf in self.bars or (nf - 1) in self.bars):
                out.append(lambda nf=nf: self.read(nf))
        return out, post

def wfrag_reads(AW, i, base):
    a = AW[i]
    return [("ds_read_b64_tr_b16", 0, 2, a, base), ("ds_read_b64_tr_b16", 2, 2, a, base + 1024)]
def kfrag_reads(AK, t, s, base):
    return [("ds_read_b128", 0, 4, AK[s], base + 1024 * t)]

def seg_from_stream(st, f0, uses, extra_pinned=None):
    mf = []; pinned = {}
    postq = []
    for f in range(f0, f0 + 8):
        u = uses(f, st.slot(f))
        for m in u:
            mf.append(m)
            if postq:
                pinned.setdefault(len(mf) - 1, []).append(postq.pop(0))
        a, post = st.after(f)
        pinned.setdefault(len(mf) - 1, []).extend(a)
        postq.extend(post)
    assert not postq
    return mf, pinned

def lane_setup(e, T, sW):
    lane, g, j, t0 = T, T + 1, T + 2, T + 3
    e.valu(f"v_lshrrev_b32 {vr(t0)}, 6, v0", w=[t0], r=[0])
    e.valu(f"v_and_b32 {vr(lane)}, 63, v0", w=[lane], r=[0])
    e.valu(f"v_readfirstlane_b32 {sr(sW)}, {vr(t0)}", r=[t0], kind="readlane", sw=[sW])
    e.valu(f"v_lshrrev_b32 {vr(g)}, 4, {vr(lane)}", w=[g], r=[lane])
    e.valu(f"v_and_b32 {vr(j)}, 15, {vr(lane)}", w=[j], r=[lane])
    return lane, g, j

def w_addr_setup(e, T, g, j, AW, sS):
    rp, cp, f, b0 = T + 3, T + 4, T + 5, T + 6
    e.valu(f"v_lshrrev_b32 {vr(rp)}, 2, {vr(j)}", w=[rp], r=[j])
    e.valu(f"v_and_b32 {vr(cp)}, 3, {vr(j)}", w=[cp], r=[j])
    e.valu(f"v_and_b32 {vr(f)}, 1, {vr(rp)}", w=[f], r=[rp])
    e.valu(f"v_and_b32 {vr(b0)}, 2, {vr(rp)}", w=[b0], r=[rp])
    e.valu(f"v_lshl_or_b32 {vr(f)}, {vr(b0)}, 1, {vr(f)}", w=[f], r=[b0, f])
    e.valu(f"v_and_b32 {vr(b0)}, 1, {vr(g)}", w=[b0], r=[g])
    e.valu(f"v_lshl_or_b32 {vr(f)}, {vr(b0)}, 3, {vr(f)}", w=[f], r=[b0, f])
    e.valu(f"v_xor_b32 {vr(f)}, {vr(f)}, {vr(cp)}", w=[f], r=[f, cp])
    e.valu(f"v_lshlrev_b32 {vr(f)}, 4, {vr(f)}", w=[f], r=[f])
    e.valu(f"v_and_b32 {vr(cp)}, 1, {vr(cp)}", w=[cp], r=[cp])
    e.valu(f"v_lshl_or_b32 {vr(f)}, {vr(cp)}, 3, {vr(f)}", w=[f], r=[cp, f])
    e.valu(f"v_lshl_add_u32 {vr(b0)}, {vr(g)}, 3, {vr(rp)}", w=[b0], r=[g, rp])
    e.valu(f"v_lshl_or_b32 {vr(b0)}, {vr(b0)}, 8, {vr(f)}", w=[b0], r=[b0, f])
    for s in range(4):
        e.valu(f"v_xor_b32 {vr(AW[2*s])}, {sr(sS+s)}, {vr(b0)}", w=[AW[2*s]], r=[b0])
        e.valu(f"v_xor_b32 {vr(AW[2*s+1])}, 8, {vr(AW[2*s])}", w=[AW[2*s+1]], r=[AW[2*s]])

def w_dma_chunk(e, T, g, j, sW, dst):
    f, b0, rho = T + 3, T + 4, T + 5
    e.valu(f"v_and_b32 {vr(f)}, 1, {vr(g)}", w=[f], r=[g])
    e.valu(f"v_and_b32 {vr(b0)}, 2, {vr(g)}", w=[b0], r=[g])
    e.valu(f"v_lshl_or_b32 {vr(f)}, {vr(b0)}, 1, {vr(f)}", w=[f], r=[b0, f])
    e.valu(f"v_mov_b32 {vr(rho)}, {sr(sW)}", w=[rho], sr_=[sW])
    e.valu(f"v_and_b32 {vr(b0)}, 1, {vr(rho)}", w=[b0], r=[rho])
    e.valu(f"v_lshl_or_b32 {vr(f)}, {vr(b0)}, 3, {vr(f)}", w=[f], r=[b0, f])
    e.valu(f"v_xor_b32 {vr(f)}, {vr(f)}, {vr(j)}", w=[f], r=[f, j])
    e.valu(f"v_lshlrev_b32 {vr(dst)}, 4, {vr(f)}", w=[dst], r=[f])
    e.valu(f"v_lshl_add_u32 {vr(rho)}, {vr(rho)}, 3, {vr(g)}", w=[rho], r=[rho, g])
    return rho

def srd(e, d, lo, hi, nbytes):
    e.salu(f"s_mov_b32 {sr(d)}, {sr(lo)}")
    e.salu(f"s_and_b32 {sr(d+1)}, {sr(hi)}, 0xffff")
    e.salu(f"s_mov_b32 {sr(d+2)}, {nbytes}")
    e.salu(f"s_mov_b32 {sr(d+3)}, 0x20000")
def srd_sel(e, d, a, b, nbytes):
    e.salu(f"s_cselect_b32 {sr(d)}, {sr(b)}, {sr(a)}")
    e.salu(f"s_cselect_b32 {sr(d+1)}, {sr(b+1)}, {sr(a+1)}")
    e.salu(f"s_mov_b32 {sr(d+2)}, {nbytes}")
    e.salu(f"s_mov_b32 {sr(d+3)}, 0x20000")

def xlane_reduce(e, op, x, t):
    e.valu(f"v_mov_b32 {vr(t)}, {vr(x)}", w=[t], r=[x])
    e.valu(f"v_permlane16_swap_b32 {vr(x)}, {vr(t)}", w=[x, t], r=[x, t], kind="permlane")
    e.valu(f"{op} {vr(x)}, {vr(x)}, {vr(t)}", w=[x], r=[x, t])
    e.valu(f"v_mov_b32 {vr(t)}, {vr(x)}", w=[t], r=[x])
    e.valu(f"v_permlane32_swap_b32 {vr(x)}, {vr(t)}", w=[x, t], r=[x, t], kind="permlane")
    e.valu(f"{op} {vr(x)}, {vr(x)}, {vr(t)}", w=[x], r=[x, t])

def pack_pair(e, dst, a, b, scale=None):
    pass

def set_exec_odd(e):
    e.salu("s_mov_b32 exec_lo, 0xffff0000")
    e.salu("s_mov_b32 exec_hi, 0xffff0000")
def set_exec_all(e):
    e.salu("s_mov_b64 exec, -1")

def kernel_wrap(name, body, nv, ns=102):
    return f""".text
.globl {name}
.p2align 8
.type {name},@function
{name}:
{body}
.section .rodata,"a"
.p2align 6
.amdhsa_kernel {name}
  .amdhsa_next_free_vgpr {nv}
  .amdhsa_next_free_sgpr {ns}
  .amdhsa_accum_offset {(nv+3)//4*4}
  .amdhsa_group_segment_fixed_size 0
  .amdhsa_kernarg_size 104
  .amdhsa_user_sgpr_count 2
  .amdhsa_user_sgpr_kernarg_segment_ptr 1
  .amdhsa_system_sgpr_workgroup_id_x 1
.end_amdhsa_kernel
"""

def gemm_phase(e, st, nk, AW, ACC0, ACC1, ACC2, XP, NXP, load_x, wslot, post_for_bundle):
    f0 = len(st.frags)
    assert f0 == 0
    for ks in range(nk):
        b = ks // 2
        base = (VREG_K if ks % 2 == 0 else VREG_V) + wslot(b) * HS
        for i in range(8):
            f = st.add(wfrag_reads(AW, i, base))
            if i == 0 and ks % 2 == 0 and ks > 0:
                st.bars[f] = (("W", b), post_for_bundle(b))
    e.wait_vm_tag(("W", 0))
    e.barrier()
    st.start()
    for ks in range(nk):
        def uses(f, fr, ks=ks):
            i = f % 8
            first = ks == 0
            u = [lambda: e.mfma(ACC0 + 4*i, fr, XP(ks, 0), None if first else ACC0 + 4*i),
                 lambda: e.mfma(ACC1 + 4*i, fr, XP(ks, 1), None if first else ACC1 + 4*i)]
            if i < 2:
                u.append(lambda: e.mfma(ACC2 + 4*i, fr, XP(ks, 2), None if first else ACC2 + 4*i))
            return u
        mf, pinned = seg_from_stream(st, ks * 8, uses)
        spread = []
        if ks >= 1 and ks - 1 + NXP < nk:
            for t in range(3):
                spread.append((lambda t=t, k=ks - 1 + NXP: load_x(k, t), 1))
        emit_segment(e, mf, pinned, spread)

def gen_k1(opts):
    e = Em()
    SX, SK, SV, SWQ, SO = 4, 8, 12, 16, 20
    sW, sW2048, sKoff, sVoff, sWqoff = 24, 25, 26, 27, 28
    sX = 29
    sS = 32
    sB, sH, sBr, sT0, sT1, sMode, sItem, sOoff, sC = 58, 59, 60, 61, 62, 63, 64, 65, 66
    A = Alloc(0)
    O0 = A.get(32, 4); O1 = A.get(32, 4); O2 = A.get(32, 4)
    QF = [A.get(16, 4) for _ in range(3)]
    NM = [A.get(4, 4) for _ in range(3)]
    S = [[A.get(8, 4) for _ in range(2)] for _ in range(2)]
    S2 = A.get(8, 4)
    FR = A.get(32, 4)
    L = [[A.get(1), A.get(1)] for _ in range(3)]
    AW = [A.get(1) for _ in range(8)]
    AK = [A.get(1) for _ in range(4)]
    VK = A.get(1); VV = A.get(1)
    T = A.get(8)
    nv = A.n
    OA = [O0, O1, O2]
    VWQ0, VWQ1, VX = L[0][0], L[0][1], L[1][0]
    xpool = R(O2 + 8, 24)[::4] + [b + 4*k for b in QF for k in range(4)] + NM + \
            [S[0][0], S[0][0]+4, S[0][1], S[0][1]+4, S[1][0], S[1][0]+4, S[1][1], S[1][1]+4, S2, S2+4]
    NXP = len(xpool) // 3
    def XP(ks, t): return xpool[(ks % NXP) * 3 + t]

    e.salu("s_cmp_ge_u32 s2, 512")
    e.raw("s_cbranch_scc1 K1_END")
    e.raw("s_load_dwordx16 s[36:51], s[0:1], 0")
    e.raw("s_load_dwordx4 s[52:55], s[0:1], 64")
    e.raw("s_load_dwordx2 s[56:57], s[0:1], 96")
    lane, g, j = lane_setup(e, T, sW)
    e.salu(f"s_and_b32 {sr(sT0)}, s2, 7")
    e.salu(f"s_lshr_b32 {sr(sT1)}, s2, 3")
    e.salu(f"s_lshr_b32 {sr(sBr)}, {sr(sT0)}, 2")
    e.salu(f"s_and_b32 {sr(sT0)}, {sr(sT0)}, 3")
    e.salu(f"s_and_b32 {sr(sB)}, {sr(sT1)}, 7")
    e.salu(f"s_lshr_b32 {sr(sT1)}, {sr(sT1)}, 3")
    e.salu(f"s_lshl_b32 {sr(sH)}, {sr(sT0)}, 3")
    e.salu(f"s_add_u32 {sr(sH)}, {sr(sH)}, {sr(sT1)}")
    e.salu(f"s_lshl_b32 {sr(sW2048)}, {sr(sW)}, 11", sr_=[sW])
    for s in range(4):
        e.salu(f"s_add_u32 {sr(sS+s)}, {sr(sW)}, {s}")
        e.salu(f"s_and_b32 {sr(sS+s)}, {sr(sS+s)}, 3")
        e.salu(f"s_lshl_b32 {sr(sS+s)}, {sr(sS+s)}, 6")
    e.salu(f"s_lshl_b32 {sr(sItem)}, {sr(sB)}, 5")
    e.salu(f"s_add_u32 {sr(sItem)}, {sr(sItem)}, {sr(sH)}")
    e.salu(f"s_lshl_b32 {sr(sItem)}, {sr(sItem)}, 17")
    e.salu(f"s_lshl_b32 {sr(sWqoff)}, {sr(sH)}, 8")
    e.salu(f"s_mul_i32 {sr(sT0)}, {sr(sB)}, 144")
    e.salu(f"s_lshl_b32 {sr(sT1)}, {sr(sW)}, 5")
    e.salu(f"s_add_u32 {sr(sX)}, {sr(sT0)}, {sr(sT1)}")
    e.salu(f"s_add_u32 {sr(sX+1)}, {sr(sX)}, 16")
    e.salu(f"s_add_u32 {sr(sX+2)}, {sr(sT0)}, 128")
    for t in range(3):
        e.salu(f"s_lshl_b32 {sr(sX+t)}, {sr(sX+t)}, 10")
    e.salu(f"s_mov_b32 {sr(sMode)}, 0")
    e.salu(f"s_mov_b32 {sr(sC)}, {f32(CSCALE):#x}")
    rho = w_dma_chunk(e, T, g, j, sW, VV)
    e.valu(f"v_lshl_add_u32 {vr(VWQ0)}, {vr(rho)}, 13, {vr(VV)}", w=[VWQ0], r=[rho, VV])
    e.valu(f"v_add_u32 {vr(VWQ1)}, {4*8192-1024}, {vr(VWQ0)}", w=[VWQ1], r=[VWQ0])
    e.valu(f"v_lshl_add_u32 {vr(VV)}, {vr(rho)}, 8, {vr(VV)}", w=[VV], r=[rho, VV])
    t3 = T + 3
    e.valu(f"v_mov_b32 {vr(t3)}, {sr(sW)}", w=[t3], sr_=[sW])
    e.valu(f"v_lshl_or_b32 {vr(t3)}, {vr(t3)}, 2, {vr(g)}", w=[t3], r=[t3, g])
    e.valu(f"v_xor_b32 {vr(t3)}, {vr(t3)}, {vr(j)}", w=[t3], r=[t3, j])
    e.valu(f"v_lshlrev_b32 {vr(t3)}, 4, {vr(t3)}", w=[t3], r=[t3])
    e.valu(f"v_lshl_add_u32 {vr(VK)}, {vr(rho)}, 8, {vr(t3)}", w=[VK], r=[rho, t3])
    e.valu(f"v_lshlrev_b32 {vr(VX)}, 10, {vr(j)}", w=[VX], r=[j])
    e.valu(f"v_lshl_add_u32 {vr(VX)}, {vr(g)}, 4, {vr(VX)}", w=[VX], r=[g, VX])
    e.raw("s_waitcnt lgkmcnt(0)")
    e.salu(f"s_cmp_eq_u32 {sr(sBr)}, 1")
    srd_sel(e, SWQ, 42, 52, 512 * 4096 * 2)
    srd_sel(e, SX, 36, 46, 8 * 144 * 512 * 2)
    srd_sel(e, SK, 38, 48, 8 * 32 * 512 * 128 * 2)
    srd_sel(e, SV, 40, 50, 8 * 32 * 512 * 128 * 2)
    srd(e, SO, 56, 57, 2 * 1152 * 4096 * 2)

    KVF = " nt" if opts.get("nt", 1) else ""
    def issue_w(b):
        sl = b % 3
        out = []
        for h in range(2):
            base = (VREG_K if h == 0 else VREG_V) + sl * HS
            def c0(base=base):
                e.salu(f"s_add_u32 m0, {sr(sW2048)}, {base}", m0=True)
                e.dma(VWQ0, SWQ, sWqoff, 0, tag=("W", b))
            def c1():
                e.dma(VWQ1, SWQ, sWqoff, 1024, tag=("W", b))
                e.salu(f"s_add_u32 {sr(sWqoff)}, {sr(sWqoff)}, {32*8192}")
            out += [c0, c1]
        return out
    def issue_kv(n):
        sl = KVSLOT[n % 5]
        out = []
        if n <= 15:
            def k0():
                e.salu(f"s_add_u32 m0, {sr(sW2048)}, {VREG_K + sl*HS}", m0=True)
                e.dma(VK, SK, sKoff, 0, flags=KVF, tag=("KV", n))
            def k1():
                e.dma(VK, SK, sKoff, 1024, flags=KVF, tag=("KV", n))
                e.salu(f"s_add_u32 {sr(sKoff)}, {sr(sKoff)}, {HS}")
            out += [k0, k1]
        if 1 <= n <= 16:
            def v0():
                e.salu(f"s_add_u32 m0, {sr(sW2048)}, {VREG_V + sl*HS}", m0=True)
                e.dma(VV, SV, sVoff, 0, flags=KVF, tag=("KV", n))
            def v1():
                e.dma(VV, SV, sVoff, 1024, flags=KVF, tag=("KV", n))
                e.salu(f"s_add_u32 {sr(sVoff)}, {sr(sVoff)}, {HS}")
            out += [v0, v1]
        return out
    def load_x(ks, t):
        e.buf_load(XP(ks, t), 4, VX, SX, sX + t, 64 * ks)
    e.salu(f"s_mov_b32 {sr(sKoff)}, {sr(sItem)}")
    e.salu(f"s_mov_b32 {sr(sVoff)}, {sr(sItem)}")
    for c in issue_w(0): c()
    for ks in (0, 1):
        for t in range(3): load_x(ks, t)
    for c in issue_w(1): c()
    for ks in (2, 3):
        for t in range(3): load_x(ks, t)
    for c in issue_w(2): c()
    for ks in range(4, NXP):
        for t in range(3): load_x(ks, t)
    for c in issue_kv(0) + issue_kv(1): c()
    w_addr_setup(e, T, g, j, AW, sS)
    t3, t4 = T + 3, T + 4
    e.valu(f"v_lshrrev_b32 {vr(t3)}, 2, {vr(j)}", w=[t3], r=[j])
    e.valu(f"v_and_b32 {vr(t4)}, 3, {vr(j)}", w=[t4], r=[j])
    e.valu(f"v_lshl_add_u32 {vr(t3)}, {vr(t3)}, 3, {vr(t4)}", w=[t3], r=[t3, t4])
    e.valu(f"v_xor_b32 {vr(t4)}, {vr(g)}, {vr(j)}", w=[t4], r=[g, j])
    e.valu(f"v_lshlrev_b32 {vr(t4)}, 4, {vr(t4)}", w=[t4], r=[t4])
    e.valu(f"v_lshl_add_u32 {vr(t3)}, {vr(t3)}, 8, {vr(t4)}", w=[t3], r=[t3, t4])
    for s in range(4):
        e.valu(f"v_xor_b32 {vr(AK[s])}, {sr(sS+s)}, {vr(t3)}", w=[AK[s]], r=[t3])
        e.valu(f"v_add_u32 {vr(AK[s])}, {VREG_K}, {vr(AK[s])}", w=[AK[s]], r=[AK[s]])

    st = Stream(e, FR)
    def post_w(b):
        nb = b + 2
        if nb <= 7: return issue_w(nb)
        return issue_kv(nb - 8 + 2)
    gemm_phase(e, st, 16, AW, O0, O1, O2, XP, NXP, load_x, lambda b: b % 3, post_w)
    def pack_scaled(dst, a, scale_txt, scale_r=(), scale_s=()):
        for half in range(2):
            for r in range(4):
                x = a + 4*half + r
                e.valu(f"v_mul_f32 {vr(x)}, {scale_txt}, {vr(x)}", w=[x], r=[x] + list(scale_r), sr_=scale_s)
        for k in range(4):
            e.valu(f"v_cvt_pk_bf16_f32 {vr(dst+k)}, {vr(a+2*k)}, {vr(a+2*k+1)}", w=[dst+k], r=[a+2*k, a+2*k+1])
    QX = S2
    pack_scaled(QX, O2, sr(sC))
    for t in range(2):
        for s in range(4):
            pack_scaled(QF[t] + 4*s, OA[t] + 8*s, sr(sC))
    set_exec_odd(e)
    for b4 in [QX] + [QF[t] + 4*s for t in range(2) for s in range(4)]:
        e.valu(f"v_swap_b32 {vr(b4)}, {vr(b4+2)}", w=[b4, b4+2], r=[b4, b4+2])
        e.valu(f"v_swap_b32 {vr(b4+1)}, {vr(b4+3)}", w=[b4+1, b4+3], r=[b4+1, b4+3])
    set_exec_all(e)
    XA = VREG_V + 3 * HS
    e.valu(f"v_lshlrev_b32 {vr(t3)}, 4, {vr(lane)}", w=[t3], r=[lane])
    e.salu(f"s_lshl_b32 {sr(sT0)}, {sr(sW)}, 10")
    e.valu(f"v_add_u32 {vr(t4)}, {sr(sT0)}, {vr(t3)}", w=[t4], r=[t3])
    e.ds_write("ds_write_b128", t4, QX, 4, XA)
    e.wait_all(vm=False)
    e.barrier()
    for s in range(4):
        e.salu(f"s_lshl_b32 {sr(sT0)}, {sr(sS+s)}, 4")
        e.valu(f"v_add_u32 {vr(t4)}, {sr(sT0)}, {vr(t3)}", w=[t4], r=[t3])
        e.ds_read("ds_read_b128", QF[2] + 4*s, 4, t4, XA)
    if opts.get("dumpq"):
        pass
    e.label("ATT_ENTRY")
    entry_state = e.snapshot()
    for c in issue_kv(4): c()
    st = Stream(e, FR)
    for n in range(17):
        sl = KVSLOT[n % 5]
        first = len(st.frags)
        if n <= 15:
            for t in range(2):
                for s in range(4):
                    st.add(kfrag_reads(AK, t, s, sl * HS))
        if n >= 1:
            for i in range(8):
                st.add(wfrag_reads(AW, i, VREG_V + sl * HS))
        if n >= 1:
            st.bars[first] = (("KV", n), issue_kv(n + 4) if n + 4 <= 16 else [])
    st.start()
    for t in range(3):
        for k in range(2):
            e.valu(f"v_mov_b32 {vr(L[t][k])}, 0", w=[L[t][k]])
    def kseg(n): return 0 if n == 0 else 16 * n - 8
    def vseg(n): return 16 * n + 16 if n < 15 else 16 * 16 - 8
    assert vseg(15) == len(st.frags) - 8 and vseg(0) == 16 and kseg(1) == 8

    def sm_part(Sb, Lr, part):
        out = []
        b = Sb + 4 * part
        for r in range(4):
            out.append((lambda r=r: e.trans(f"v_exp_f32 {vr(b+r)}, {vr(b+r)}", w=[b+r], r=[b+r]), 2))
        seq = [out[0], out[1]]
        def add(r):
            return (lambda: e.valu(f"v_add_f32 {vr(Lr[r&1])}, {vr(Lr[r&1])}, {vr(b+r)}", w=[Lr[r&1]], r=[Lr[r&1], b+r]), 1)
        def cvt(k):
            d = Sb + 2 * part + k
            return (lambda: e.valu(f"v_cvt_pk_bf16_f32 {vr(d)}, {vr(b+2*k)}, {vr(b+2*k+1)}", w=[d], r=[b+2*k, b+2*k+1]), 1)
        seq += [add(0), out[2], add(1), out[3], cvt(0), add(2), add(3), cvt(1)]
        if part == 0:
            pass
        return seq
    def first_max(Sb, t):
        m, tt = T + 5, T + 6
        e.valu(f"v_max3_f32 {vr(m)}, {vr(Sb)}, {vr(Sb+1)}, {vr(Sb+2)}", w=[m], r=[Sb, Sb+1, Sb+2])
        e.valu(f"v_max3_f32 {vr(m)}, {vr(m)}, {vr(Sb+3)}, {vr(Sb+4)}", w=[m], r=[m, Sb+3, Sb+4])
        e.valu(f"v_max3_f32 {vr(m)}, {vr(m)}, {vr(Sb+5)}, {vr(Sb+6)}", w=[m], r=[m, Sb+5, Sb+6])
        e.valu(f"v_max_f32 {vr(m)}, {vr(m)}, {vr(Sb+7)}", w=[m], r=[m, Sb+7])
        xlane_reduce(e, "v_max_f32", m, tt)
        lab = e.newlabel("SKIPM")
        e.salu(f"s_cmp_eq_u32 {sr(sMode)}, 1")
        e.raw(f"s_cbranch_scc1 {lab}")
        s0 = e.snapshot()
        for k in range(4):
            e.valu(f"v_sub_f32 {vr(NM[t]+k)}, 0, {vr(m)}", w=[NM[t]+k], r=[m])
        s1 = e.snapshot()
        e.label(lab)
        e.merge(s0, s1)
        for r in range(8):
            e.valu(f"v_add_f32 {vr(Sb+r)}, {vr(Sb+r)}, {vr(NM[t])}", w=[Sb+r], r=[Sb+r, NM[t]])

    def qk_seg(n, with2, spread):
        p = n & 1
        def uses(f, fr):
            k = f - kseg(n); t = k // 4; s = k % 4
            u = []
            for q in range(2):
                d = S[p][q] + 4*t
                c = (None if n == 0 else NM[q]) if s == 0 else d
                u.append(lambda d=d, c=c, q=q: e.mfma(d, fr, QF[q] + 4*s, c))
            if with2:
                d = S2 + 4*t
                c = (None if n < 4 else NM[2]) if s == 0 else d
                u.append(lambda d=d, c=c: e.mfma(d, fr, QF[2] + 4*s, c))
            return u
        mf, pinned = seg_from_stream(st, kseg(n), uses)
        emit_segment(e, mf, pinned, spread)
    def pv_seg(n, with2, spread):
        p = n & 1
        def uses(f, fr):
            i = f - vseg(n)
            u = []
            for q in range(2):
                d = OA[q] + 4*i
                u.append(lambda d=d, q=q: e.mfma(d, fr, S[p][q], None if n == 0 else d))
            if with2:
                d = O2 + 4*i
                u.append(lambda d=d: e.mfma(d, fr, S2, None if n < 4 else d))
            return u
        mf, pinned = seg_from_stream(st, vseg(n), uses)
        emit_segment(e, mf, pinned, spread)
    def sm2_block(n):
        if n < 4:
            first_max(S2, 2)
        for part in range(2):
            for c, _ in sm_part(S2, L[2], part): c()
    def interleave2(a, b):
        out = []
        for x, y in zip(a, b): out += [x, y]
        return out
    isw = lambda n: f"s_cmp_eq_u32 {sr(sW)}, {n & 3}"
    e.variant(isw(0), lambda: qk_seg(0, True, []), lambda: qk_seg(0, False, []))
    for q in range(2): first_max(S[0][q], q)
    for n in range(16):
        p = n & 1
        sp0 = lambda: interleave2(sm_part(S[p][0], L[0], 0), sm_part(S[p][1], L[1], 0))
        sp1 = lambda: interleave2(sm_part(S[p][0], L[0], 1), sm_part(S[p][1], L[1], 1))
        if n >= 1:
            e.variant(isw(n - 1), lambda: pv_seg(n - 1, True, sp0()), lambda: pv_seg(n - 1, False, sp0()))
        else:
            for c, _ in sp0(): c()
        e.variant(isw(n), lambda: sm2_block(n), lambda: None)
        if n + 1 <= 15:
            e.variant(isw(n + 1), lambda: qk_seg(n + 1, True, sp1()), lambda: qk_seg(n + 1, False, sp1()))
        else:
            for c, _ in sp1(): c()
    e.variant(isw(15), lambda: pv_seg(15, True, []), lambda: pv_seg(15, False, []))

    tt = T + 6
    for t in range(3):
        e.valu(f"v_add_f32 {vr(L[t][0])}, {vr(L[t][0])}, {vr(L[t][1])}", w=[L[t][0]], r=L[t])
        xlane_reduce(e, "v_add_f32", L[t][0], tt)
    chk = T + 5
    e.valu(f"v_mov_b32 {vr(chk)}, 0", w=[chk])
    chk2 = T + 7
    e.valu(f"v_mov_b32 {vr(chk2)}, 0", w=[chk2])
    for k in range(96):
        c = chk if k % 2 == 0 else chk2
        e.valu(f"v_fma_f32 {vr(c)}, {vr(O0+k)}, 0, {vr(c)}", w=[c], r=[O0+k, c])
    e.valu(f"v_add_f32 {vr(chk)}, {vr(chk)}, {vr(chk2)}", w=[chk], r=[chk, chk2])
    for t in range(3):
        e.valu(f"v_add_f32 {vr(chk)}, {vr(chk)}, {vr(L[t][0])}", w=[chk], r=[chk, L[t][0]])
    e.salu(f"s_mov_b32 {sr(sT0)}, {f32(2.0**30):#x}")
    e.valu(f"v_cmp_ngt_f32 vcc, {sr(sT0)}, {vr(chk)}", r=[chk], sw=["vcc"])
    CA = [VREG_V + 0, VREG_V + HS, VREG_K + 0, VREG_K + HS]
    ML = VREG_V + 2 * HS
    e.salu(f"s_and_b32 {sr(sT0)}, {sr(sW)}, 1", sr_=[])
    e.salu(f"s_lshl_b32 {sr(sT0)}, {sr(sT0)}, 13")
    e.salu(f"s_lshr_b32 {sr(sT1)}, {sr(sW)}, 1")
    e.salu(f"s_mul_i32 {sr(sT1)}, {sr(sT1)}, {VREG_K}")
    e.salu(f"s_add_u32 {sr(sT0)}, {sr(sT0)}, {sr(sT1)}")
    e.valu(f"v_lshlrev_b32 {vr(t3)}, 4, {vr(lane)}", w=[t3], r=[lane])
    for s in range(4):
        e.salu(f"s_lshl_b32 {sr(sT1)}, {sr(sS+s)}, 5")
        e.salu(f"s_add_u32 {sr(sT1)}, {sr(sT1)}, {sr(sT0)}")
        e.valu(f"v_add_u32 {vr(t4)}, {sr(sT1)}, {vr(t3)}", w=[t4], r=[t3])
        e.ds_write("ds_write_b128", t4, O2 + 8*s, 4, 0)
        e.ds_write("ds_write_b128", t4, O2 + 8*s + 4, 4, 1024)
    e.valu(f"v_mov_b32 {vr(S2)}, {vr(NM[2])}", w=[S2], r=[NM[2]])
    e.valu(f"v_mov_b32 {vr(S2+1)}, {vr(L[2][0])}", w=[S2+1], r=[L[2][0]])
    e.salu(f"s_lshl_b32 {sr(sT1)}, {sr(sW)}, 9")
    e.valu(f"v_lshlrev_b32 {vr(t4)}, 3, {vr(lane)}", w=[t4], r=[lane])
    e.valu(f"v_add_u32 {vr(tt)}, {sr(sT1)}, {vr(t4)}", w=[tt], r=[t4])
    e.ds_write("ds_write_b64", tt, S2, 2, ML)
    e.salu(f"s_cmp_lg_u64 vcc, 0", sr_=["vcc"])
    e.salu(f"s_cselect_b32 {sr(sT0)}, 1, 0")
    e.valu(f"v_mov_b32 {vr(S2+2)}, {sr(sT0)}", w=[S2+2])
    e.salu(f"s_lshl_b32 {sr(sT1)}, {sr(sW)}, 2")
    e.valu(f"v_mov_b32 {vr(tt)}, {sr(sT1)}", w=[tt])
    e.ds_write("ds_write_b32", tt, S2 + 2, 1, ML + 2048)
    VO = S[1][1]
    e.valu(f"v_lshlrev_b32 {vr(tt)}, 13, {vr(j)}", w=[tt], r=[j])
    e.valu(f"v_lshl_add_u32 {vr(tt)}, {vr(g)}, 4, {vr(tt)}", w=[tt], r=[g, tt])
    for s in range(4):
        e.valu(f"v_add_u32 {vr(VO+s)}, {sr(sS+s)}, {vr(tt)}", w=[VO+s], r=[tt])
    e.salu(f"s_mul_i32 {sr(sOoff)}, {sr(sBr)}, {1152*8192}")
    e.salu(f"s_lshl_b32 {sr(sT0)}, {sr(sH)}, 8")
    e.salu(f"s_add_u32 {sr(sOoff)}, {sr(sOoff)}, {sr(sT0)}")
    for t in range(2):
        e.trans(f"v_rcp_f32 {vr(L[t][1])}, {vr(L[t][0])}", w=[L[t][1]], r=[L[t][0]])
    for t in range(2):
        for s in range(4):
            pack_scaled(OA[t] + 8*s, OA[t] + 8*s, vr(L[t][1]), scale_r=[L[t][1]])
    set_exec_odd(e)
    for t in range(2):
        for s in range(4):
            b4 = OA[t] + 8*s
            e.valu(f"v_swap_b32 {vr(b4)}, {vr(b4+2)}", w=[b4, b4+2], r=[b4, b4+2])
            e.valu(f"v_swap_b32 {vr(b4+1)}, {vr(b4+3)}", w=[b4+1, b4+3], r=[b4+1, b4+3])
    set_exec_all(e)
    for t in range(2):
        e.salu(f"s_lshl_b32 {sr(sT0)}, {sr(sX+t)}, 3")
        e.salu(f"s_add_u32 {sr(sT0)}, {sr(sT0)}, {sr(sOoff)}")
        for s in range(4):
            e.buf_store(OA[t] + 8*s, 4, VO + s, SO, sT0)
    e.wait_all(vm=False)
    e.barrier()
    FL = FR
    e.valu(f"v_mov_b32 {vr(tt)}, 0", w=[tt])
    e.ds_read("ds_read_b128", FL, 4, tt, ML + 2048)
    MLR = FR + 4
    for w in range(4):
        e.ds_read("ds_read_b64", MLR + 2*w, 2, t4, ML + 512 * w)
    PR = O2
    e.salu(f"s_lshl_b32 {sr(sT1)}, {sr(sW)}, 11")
    e.valu(f"v_add_u32 {vr(tt)}, {sr(sT1)}, {vr(t3)}", w=[tt], r=[t3])
    for w in range(4):
        e.ds_read("ds_read_b128", PR + 8*w, 4, tt, CA[w])
        e.ds_read("ds_read_b128", PR + 8*w + 4, 4, tt, CA[w] + 1024)
    e.valu(f"v_or3_b32 {vr(FL)}, {vr(FL)}, {vr(FL+1)}, {vr(FL+2)}", w=[FL], r=[FL, FL+1, FL+2])
    e.valu(f"v_or_b32 {vr(FL)}, {vr(FL)}, {vr(FL+3)}", w=[FL], r=[FL, FL+3])
    e.valu(f"v_readfirstlane_b32 {sr(sT0)}, {vr(FL)}", r=[FL], kind="readlane", sw=[sT0])
    e.salu(f"s_sub_u32 {sr(sT0)}, {sr(sT0)}, {sr(sMode)}", sr_=[sT0])
    e.salu(f"s_cmp_eq_u32 {sr(sT0)}, 1")
    e.raw("s_cbranch_scc1 K1_FALLBACK")
    fb_state = e.snapshot()
    nM = FR + 12
    e.valu(f"v_min3_f32 {vr(nM)}, {vr(MLR)}, {vr(MLR+2)}, {vr(MLR+4)}", w=[nM], r=[MLR, MLR+2, MLR+4])
    e.valu(f"v_min_f32 {vr(nM)}, {vr(nM)}, {vr(MLR+6)}", w=[nM], r=[nM, MLR+6])
    for w in range(4):
        e.valu(f"v_sub_f32 {vr(MLR+2*w)}, {vr(nM)}, {vr(MLR+2*w)}", w=[MLR+2*w], r=[nM, MLR+2*w])
    for w in range(4):
        e.trans(f"v_exp_f32 {vr(MLR+2*w)}, {vr(MLR+2*w)}", w=[MLR+2*w], r=[MLR+2*w])
    Lt = FR + 13
    e.valu(f"v_mul_f32 {vr(Lt)}, {vr(MLR)}, {vr(MLR+1)}", w=[Lt], r=[MLR, MLR+1])
    for w in range(1, 4):
        e.valu(f"v_fmac_f32 {vr(Lt)}, {vr(MLR+2*w)}, {vr(MLR+2*w+1)}", w=[Lt], r=[Lt, MLR+2*w, MLR+2*w+1])
    e.trans(f"v_rcp_f32 {vr(Lt)}, {vr(Lt)}", w=[Lt], r=[Lt])
    for k in range(8):
        e.valu(f"v_mul_f32 {vr(PR+k)}, {vr(MLR)}, {vr(PR+k)}", w=[PR+k], r=[MLR, PR+k])
        for w in range(1, 4):
            e.valu(f"v_fmac_f32 {vr(PR+k)}, {vr(MLR+2*w)}, {vr(PR+8*w+k)}", w=[PR+k], r=[PR+k, MLR+2*w, PR+8*w+k])
    pack_scaled(PR, PR, vr(Lt), scale_r=[Lt])
    set_exec_odd(e)
    e.valu(f"v_swap_b32 {vr(PR)}, {vr(PR+2)}", w=[PR, PR+2], r=[PR, PR+2])
    e.valu(f"v_swap_b32 {vr(PR+1)}, {vr(PR+3)}", w=[PR+1, PR+3], r=[PR+1, PR+3])
    set_exec_all(e)
    e.salu(f"s_lshl_b32 {sr(sT0)}, {sr(sX+2)}, 3")
    e.salu(f"s_add_u32 {sr(sT0)}, {sr(sT0)}, {sr(sOoff)}")
    e.buf_store(PR, 4, VO + 0, SO, sT0)
    e.label("K1_END")
    e.raw("s_endpgm")
    e.restore(fb_state)
    e.label("K1_FALLBACK")
    e.wait_all(force=True)
    e.barrier()
    e.salu(f"s_mov_b32 {sr(sMode)}, 1")
    e.salu(f"s_mov_b32 {sr(sKoff)}, {sr(sItem)}")
    e.salu(f"s_mov_b32 {sr(sVoff)}, {sr(sItem)}")
    for n in range(4):
        for c in issue_kv(n): c()
    VF = S[1][1]
    e.valu(f"v_lshlrev_b32 {vr(tt)}, 8, {vr(j)}", w=[tt], r=[j])
    e.valu(f"v_lshl_add_u32 {vr(tt)}, {vr(g)}, 4, {vr(tt)}", w=[tt], r=[g, tt])
    for s in range(4):
        e.valu(f"v_add_u32 {vr(VF+s)}, {sr(sS+s)}, {vr(tt)}", w=[VF+s], r=[tt])
    for t in range(3):
        e.valu(f"v_mov_b32 {vr(L[t][0])}, 0xff800000", w=[L[t][0]])
    e.salu(f"s_mov_b32 {sr(sT0)}, {sr(sItem)}")
    e.salu(f"s_add_u32 {sr(sT1)}, {sr(sItem)}, {512*256}")
    e.label("K1_FB_LOOP")
    for s in range(4):
        e.buf_load(FR + 4*s, 4, VF + s, SK, sT0)
    Sx = [S[0][0], S[0][0] + 4, S[0][1]]
    for s in range(4):
        for t in range(3):
            e.mfma(Sx[t], FR + 4*s, QF[t] + 4*s, None if s == 0 else Sx[t])
    for t in range(3):
        m = L[t][0]
        e.valu(f"v_max3_f32 {vr(m)}, {vr(m)}, {vr(Sx[t])}, {vr(Sx[t]+1)}", w=[m], r=[m, Sx[t], Sx[t]+1])
        e.valu(f"v_max3_f32 {vr(m)}, {vr(m)}, {vr(Sx[t]+2)}, {vr(Sx[t]+3)}", w=[m], r=[m, Sx[t]+2, Sx[t]+3])
    e.salu(f"s_add_u32 {sr(sT0)}, {sr(sT0)}, {16*256}")
    e.salu(f"s_cmp_lt_u32 {sr(sT0)}, {sr(sT1)}")
    e.nop(8)
    e.raw("s_cbranch_scc1 K1_FB_LOOP")
    for t in range(3):
        xlane_reduce(e, "v_max_f32", L[t][0], tt)
        for k in range(4):
            e.valu(f"v_sub_f32 {vr(NM[t]+k)}, 0, {vr(L[t][0])}", w=[NM[t]+k], r=[L[t][0]])
    e.wait_all(force=True)
    e.barrier()
    e.nop(8)
    e.raw("s_branch ATT_ENTRY")
    return e, nv

def gen_k2(opts):
    NSPL = opts.get("nsplit", 4)
    nk = 128 // NSPL
    nwg = 16 * 4 * NSPL
    e = Em()
    SX, SWO, SP = 4, 8, 12
    sW, sW2048, sWoff = 24, 25, 26
    sX = 29; sS = 32
    sBB, sN, sKs, sT0, sT1, sBr = 58, 59, 60, 61, 62, 63
    A = Alloc(0)
    O0 = A.get(32, 4); O1 = A.get(32, 4); O2 = A.get(8, 4)
    FR = A.get(32, 4)
    NXP = opts.get("k2_nxp", 10)
    XB = A.get(NXP * 12, 4)
    AW = [A.get(1) for _ in range(8)]
    VW0 = A.get(1); VW1 = A.get(1); VX = A.get(1)
    T = A.get(8)
    nv = A.n
    def XP(ks, t): return XB + ((ks % NXP) * 3 + t) * 4
    e.salu(f"s_cmp_ge_u32 s2, {nwg}")
    e.raw("s_cbranch_scc1 K2_END")
    e.raw("s_load_dwordx2 s[36:37], s[0:1], 32")
    e.raw("s_load_dwordx2 s[38:39], s[0:1], 72")
    e.raw("s_load_dwordx2 s[56:57], s[0:1], 96")
    lane, g, j = lane_setup(e, T, sW)
    e.salu(f"s_and_b32 {sr(sT0)}, s2, 7")
    e.salu(f"s_lshr_b32 {sr(sT1)}, s2, 3")
    e.salu(f"s_lshr_b32 {sr(sBr)}, {sr(sT0)}, 2")
    e.salu(f"s_and_b32 {sr(sKs)}, {sr(sT0)}, 3")
    e.salu(f"s_and_b32 {sr(sN)}, {sr(sT1)}, 3")
    e.salu(f"s_lshr_b32 {sr(sT1)}, {sr(sT1)}, 2")
    e.salu(f"s_and_b32 {sr(sBB)}, {sr(sT1)}, 7")
    if NSPL == 8:
        e.salu(f"s_lshr_b32 {sr(sT1)}, {sr(sT1)}, 3")
        e.salu(f"s_lshl_b32 {sr(sKs)}, {sr(sKs)}, 1")
        e.salu(f"s_add_u32 {sr(sKs)}, {sr(sKs)}, {sr(sT1)}")
    else:
        assert NSPL == 4
    e.salu(f"s_lshl_b32 {sr(sT0)}, {sr(sBr)}, 3")
    e.salu(f"s_add_u32 {sr(sBB)}, {sr(sBB)}, {sr(sT0)}")
    e.salu(f"s_lshl_b32 {sr(sW2048)}, {sr(sW)}, 11", sr_=[sW])
    for s in range(4):
        e.salu(f"s_add_u32 {sr(sS+s)}, {sr(sW)}, {s}")
        e.salu(f"s_and_b32 {sr(sS+s)}, {sr(sS+s)}, 3")
        e.salu(f"s_lshl_b32 {sr(sS+s)}, {sr(sS+s)}, 6")
    e.salu(f"s_mul_i32 {sr(sWoff)}, {sr(sKs)}, {nk*32*1024}")
    e.salu(f"s_lshl_b32 {sr(sT0)}, {sr(sN)}, 8")
    e.salu(f"s_add_u32 {sr(sWoff)}, {sr(sWoff)}, {sr(sT0)}")
    e.salu(f"s_mul_i32 {sr(sT0)}, {sr(sBB)}, 144")
    e.salu(f"s_lshl_b32 {sr(sT1)}, {sr(sW)}, 5")
    e.salu(f"s_add_u32 {sr(sX)}, {sr(sT0)}, {sr(sT1)}")
    e.salu(f"s_add_u32 {sr(sX+1)}, {sr(sX)}, 16")
    e.salu(f"s_add_u32 {sr(sX+2)}, {sr(sT0)}, 128")
    e.salu(f"s_mul_i32 {sr(sT0)}, {sr(sKs)}, {nk*64}")
    for t in range(3):
        e.salu(f"s_lshl_b32 {sr(sX+t)}, {sr(sX+t)}, 13")
        e.salu(f"s_add_u32 {sr(sX+t)}, {sr(sX+t)}, {sr(sT0)}")
    rho = w_dma_chunk(e, T, g, j, sW, VW0)
    e.valu(f"v_lshl_add_u32 {vr(VW0)}, {vr(rho)}, 10, {vr(VW0)}", w=[VW0], r=[rho, VW0])
    e.valu(f"v_add_u32 {vr(VW1)}, {4*1024-1024}, {vr(VW0)}", w=[VW1], r=[VW0])
    e.valu(f"v_lshlrev_b32 {vr(VX)}, 13, {vr(j)}", w=[VX], r=[j])
    e.valu(f"v_lshl_add_u32 {vr(VX)}, {vr(g)}, 4, {vr(VX)}", w=[VX], r=[g, VX])
    e.raw("s_waitcnt lgkmcnt(0)")
    e.salu(f"s_cmp_eq_u32 {sr(sBr)}, 1")
    srd_sel(e, SWO, 36, 38, 4096 * 512 * 2)
    srd(e, SX, 56, 57, 2 * 1152 * 4096 * 2)
    srd(e, SP, 56, 57, WS_P + nwg * 144 * 128 * 4)
    NSL = 3
    def issue_w(b):
        sl = b % NSL
        out = []
        for h in range(2):
            base = (VREG_K if h == 0 else VREG_V) + sl * HS
            def c0(base=base):
                e.salu(f"s_add_u32 m0, {sr(sW2048)}, {base}", m0=True)
                e.dma(VW0, SWO, sWoff, 0, tag=("W", b))
            def c1():
                e.dma(VW1, SWO, sWoff, 1024, tag=("W", b))
                e.salu(f"s_add_u32 {sr(sWoff)}, {sr(sWoff)}, {32*1024}")
            out += [c0, c1]
        return out
    def load_x(ks, t):
        e.buf_load(XP(ks, t), 4, VX, SX, sX + t, 64 * ks)
    for c in issue_w(0): c()
    for ks in (0, 1):
        for t in range(3): load_x(ks, t)
    for c in issue_w(1): c()
    for ks in (2, 3):
        for t in range(3): load_x(ks, t)
    for c in issue_w(2): c()
    for ks in range(4, NXP):
        for t in range(3): load_x(ks, t)
    w_addr_setup(e, T, g, j, AW, sS)
    st = Stream(e, FR)
    def post_w(b):
        nb = b + 2
        return issue_w(nb) if nb < nk // 2 else []
    gemm_phase(e, st, nk, AW, O0, O1, O2, XP, NXP, load_x, lambda b: b % NSL, post_w)
    e.salu(f"s_lshl_b32 {sr(sT0)}, {sr(sKs)}, 4")
    e.salu(f"s_add_u32 {sr(sT0)}, {sr(sT0)}, {sr(sBB)}")
    e.salu(f"s_lshl_b32 {sr(sT0)}, {sr(sT0)}, 2")
    e.salu(f"s_add_u32 {sr(sT0)}, {sr(sT0)}, {sr(sN)}")
    e.salu(f"s_mul_i32 {sr(sT0)}, {sr(sT0)}, {9*8192}")
    e.salu(f"s_add_u32 {sr(sT0)}, {sr(sT0)}, {WS_P}")
    e.salu(f"s_lshl_b32 {sr(sT1)}, {sr(sW)}, 14")
    e.salu(f"s_add_u32 {sr(sX)}, {sr(sT0)}, {sr(sT1)}")
    e.salu(f"s_add_u32 {sr(sX+1)}, {sr(sX)}, 8192")
    e.salu(f"s_add_u32 {sr(sX+2)}, {sr(sT0)}, {8*8192}")
    t3 = T + 3
    VO = FR
    e.valu(f"v_lshlrev_b32 {vr(t3)}, 4, {vr(lane)}", w=[t3], r=[lane])
    for s in range(4):
        e.salu(f"s_lshl_b32 {sr(sT1)}, {sr(sS+s)}, 5")
        e.valu(f"v_add_u32 {vr(VO+s)}, {sr(sT1)}, {vr(t3)}", w=[VO+s], r=[t3])
    for t, acc in enumerate((O0, O1)):
        for i in range(8):
            e.buf_store(acc + 4*i, 4, VO + i // 2, SP, sX + t, 1024 * (i & 1))
    for i in range(2):
        e.buf_store(O2 + 4*i, 4, VO, SP, sX + 2, 1024 * i)
    e.label("K2_END")
    e.raw("s_endpgm")
    return e, nv, nwg

def gen_k3(opts):
    NSPL = opts.get("nsplit", 4)
    nwg = 16 * 4 * 9
    e = Em()
    SP, SOUT = 4, 8
    e.salu(f"s_cmp_ge_u32 s2, {nwg}")
    e.raw("s_cbranch_scc1 K3_END")
    e.raw("s_load_dwordx2 s[20:21], s[0:1], 80")
    e.raw("s_load_dwordx2 s[22:23], s[0:1], 96")
    lane, g, j, t3, t4, va, vb, vo = 1, 2, 3, 4, 5, 6, 7, 8
    e.valu(f"v_lshrrev_b32 {vr(g)}, 4, v0", w=[g], r=[0])
    e.valu(f"v_and_b32 {vr(j)}, 15, v0", w=[j], r=[0])
    e.valu(f"v_and_b32 {vr(lane)}, 63, v0", w=[lane], r=[0])
    e.valu(f"v_lshrrev_b32 {vr(t3)}, 6, v0", w=[t3], r=[0])
    e.valu(f"v_lshlrev_b32 {vr(t3)}, 11, {vr(t3)}", w=[t3], r=[t3])
    e.valu(f"v_lshl_add_u32 {vr(t3)}, {vr(lane)}, 4, {vr(t3)}", w=[t3], r=[lane, t3])
    e.valu(f"v_and_b32 {vr(t4)}, 1, {vr(g)}", w=[t4], r=[g])
    e.valu(f"v_lshl_add_u32 {vr(va)}, {vr(t4)}, 10, {vr(t3)}", w=[va], r=[t4, t3])
    e.valu(f"v_xor_b32 {vr(vb)}, 0x400, {vr(va)}", w=[vb], r=[va])
    e.salu("s_mul_hi_u32 s12, s2, 0x1c71c71d")
    e.salu("s_mul_i32 s13, s12, 9")
    e.salu("s_sub_u32 s13, s2, s13")
    e.salu("s_and_b32 s14, s12, 3")
    e.salu("s_lshr_b32 s15, s12, 2")
    e.salu("s_lshl_b32 s16, s2, 13")
    e.salu(f"s_add_u32 s16, s16, {WS_P}")
    e.salu("s_and_b32 s17, s15, 7")
    e.salu("s_mul_i32 s17, s17, 144")
    e.salu("s_lshl_b32 s18, s13, 4")
    e.salu("s_add_u32 s17, s17, s18")
    e.salu("s_lshl_b32 s17, s17, 11")
    e.salu("s_lshr_b32 s18, s15, 3")
    e.salu("s_lshl_b32 s18, s18, 10")
    e.salu("s_add_u32 s17, s17, s18")
    e.salu("s_lshl_b32 s18, s14, 8")
    e.salu("s_add_u32 s17, s17, s18")
    e.valu(f"v_lshlrev_b32 {vr(vo)}, 11, {vr(j)}", w=[vo], r=[j])
    e.valu(f"v_lshl_add_u32 {vr(vo)}, {vr(g)}, 4, {vr(vo)}", w=[vo], r=[g, vo])
    e.raw("s_waitcnt lgkmcnt(0)")
    srd(e, SP, 22, 23, WS_P + 64 * NSPL * 144 * 128 * 4)
    srd(e, SOUT, 20, 21, 8 * 144 * 1024 * 2)
    D = 12
    for k in range(NSPL):
        e.buf_load(D + 8*k, 4, va, SP, 16)
        e.buf_load(D + 8*k + 4, 4, vb, SP, 16)
        if k + 1 < NSPL:
            e.salu(f"s_add_u32 s16, s16, {64*9*8192}")
    for k in range(1, NSPL):
        for r in range(8):
            e.valu(f"v_add_f32 {vr(D+r)}, {vr(D+r)}, {vr(D+8*k+r)}", w=[D+r], r=[D+r, D+8*k+r])
    for k in range(4):
        e.valu(f"v_cvt_pk_bf16_f32 {vr(D+k)}, {vr(D+2*k)}, {vr(D+2*k+1)}", w=[D+k], r=[D+2*k, D+2*k+1])
    e.buf_store(D, 4, vo, SOUT, 17)
    e.label("K3_END")
    e.raw("s_endpgm")
    return e, D + 8 * NSPL, nwg

def header():
    ref = open(f"cdna_kernels/{NAME}.s.ref").read().splitlines()
    out = []
    for l in ref:
        if l.startswith("; Override") or "@launch" in l or l.startswith("; grid="):
            continue
        if not l.startswith(";"): break
        out.append(l)
    return "\n".join(out) + "\n"

def build(opts, path):
    e1, nv1 = gen_k1(opts)
    e2, nv2, nwg2 = gen_k2(opts)
    e3, nv3, nwg3 = gen_k3(opts)
    txt = header()
    ks = opts.get("kernels", "123")
    if "1" in ks: txt += f"; @launch kernel=attn_kernel grid=(512,1,1) block=(256,1,1) lds=81920\n"
    if "2" in ks: txt += f"; @launch kernel=oproj_kernel grid=({nwg2},1,1) block=(256,1,1) lds=81920\n"
    if "3" in ks: txt += f"; @launch kernel=reduce_kernel grid=({nwg3},1,1) block=(256,1,1) lds=0\n"
    txt += '.amdgcn_target "amdgcn-amd-amdhsa--gfx950"\n'
    txt += kernel_wrap("attn_kernel", e1.text(), nv1)
    txt += kernel_wrap("oproj_kernel", e2.text(), nv2)
    txt += kernel_wrap("reduce_kernel", e3.text(), nv3, 32)
    open(path, "w").write(txt)
    print("k1 vgpr", nv1, "counts", {k: v for k, v in e1.cnt.items() if v > 20})
    print("k2 vgpr", nv2, "k3 vgpr", nv3)

if __name__ == "__main__":
    opts = {}
    path = f"cdna_kernels/{NAME}.s"
    for a in sys.argv[1:]:
        if "=" in a:
            k, v = a.split("=")
            opts[k] = int(v) if v.lstrip("-").isdigit() and k != "kernels" else v
        else:
            path = a
    build(opts, path)
```

```python
import copy

def vr(base, n=1):
    return f"v{base}" if n == 1 else f"v[{base}:{base+n-1}]"
def sr(base, n=1):
    return f"s{base}" if n == 1 else f"s[{base}:{base+n-1}]"
def R(base, n=1):
    return list(range(base, base + n))

class State:
    def __init__(self):
        self.t = 0
        self.valu_w = {}
        self.trans_w = {}
        self.mfma_w = {}
        self.mfma_c = {}
        self.store_r = {}
        self.sg_valu_w = {}
        self.m0_w = -100
        self.exec_valu_w = -100
        self.lgkm = []
        self.vm = []
        self.epoch = 0
        self.opid = {'d': 0, 'l': 0}
        self.lw = {}
        self.lr = {}

class Em:
    def __init__(self):
        self.lines = []
        self.s = State()
        self.nlabel = 0
        self.cnt = {}
        self.cold = []
    def raw(self, txt, ws=1, kind=None):
        self.lines.append("    " + txt)
        self.s.t += ws
        k = kind or txt.split()[0]
        self.cnt[k] = self.cnt.get(k, 0) + 1
    def comment(self, txt):
        self.lines.append("    ; " + txt)
    def label(self, name):
        self.lines.append(name + ":")
    def newlabel(self, p="L"):
        self.nlabel += 1
        return f"{p}_{self.nlabel}"
    def nop(self, n):
        while n > 0:
            k = min(n, 16)
            self.raw(f"s_nop {k-1}", ws=k)
            n -= k
    def _pad(self, need):
        if need > 0:
            self.nop(need)
    def _wait_regs(self, regs):
        regs = set(regs)
        s = self.s
        li = -1
        for i, d in enumerate(s.lgkm):
            if d & regs:
                li = i
        vi = -1
        for i, (tag, d) in enumerate(s.vm):
            if d & regs:
                vi = i
        self._wait(vi, li)
    def _done(self, ents):
        s = self.s
        for en in ents:
            d = en[1] if isinstance(en, tuple) else en
            for x in d:
                if not isinstance(x, int):
                    kind, oid = x
                    t = s.lw if kind == "w" else s.lr
                    if oid in t and t[oid][2] is None: t[oid][2] = s.epoch
    def _lds_access(self, kind, rng, desc, own=False):
        if rng is None: return []
        s = self.s
        lo, hi = rng
        def chk(t, what):
            for oid, (a, b, de, ds) in list(t.items()):
                if a < hi and lo < b:
                    ok = de is not None and (de < s.epoch or own)
                    assert ok, f"LDS race: {desc} [{lo},{hi}) vs {what} {ds} [{a},{b}) done_epoch={de} now={s.epoch}"
        chk(s.lw, "writer")
        if kind == "w":
            chk(s.lr, "reader")
            for t in (s.lw, s.lr):
                for oid, (a, b, de, ds) in list(t.items()):
                    if lo <= a and b <= hi: del t[oid]
        q = 'd' if desc.startswith("dma") else 'l'
        s.opid[q] += 1
        oid = (q, s.opid[q])
        (s.lw if kind == "w" else s.lr)[oid] = [lo, hi, None, desc]
        return [(kind, oid)]
    def _wait(self, vi, li):
        s = self.s
        parts = []
        if vi >= 0:
            n = min(len(s.vm) - 1 - vi, 62)
            parts.append(f"vmcnt({n})")
            self._done(s.vm[:len(s.vm) - n])
            s.vm = s.vm[len(s.vm) - n:] if n > 0 else []
        if li >= 0:
            n = min(len(s.lgkm) - 1 - li, 14)
            parts.append(f"lgkmcnt({n})")
            self._done(s.lgkm[:len(s.lgkm) - n])
            s.lgkm = s.lgkm[len(s.lgkm) - n:] if n > 0 else []
        if parts:
            self.raw("s_waitcnt " + " ".join(parts))
    def wait_vm_tag(self, tag, also_lgkm0=False):
        s = self.s
        vi = -1
        for i, (tg, d) in enumerate(s.vm):
            if tg == tag:
                vi = i
        li = len(s.lgkm) - 1 if also_lgkm0 else -1
        self._wait(vi, li)
    def wait_all(self, vm=True, lgkm=True, force=False):
        s = self.s
        if force:
            self.raw("s_waitcnt " + " ".join((["vmcnt(0)"] if vm else []) + (["lgkmcnt(0)"] if lgkm else [])))
            if vm: self._done(s.vm); s.vm = []
            if lgkm: self._done(s.lgkm); s.lgkm = []
            return
        self._wait(len(s.vm) - 1 if vm else -1, len(s.lgkm) - 1 if lgkm else -1)
    def _haz(self, kind, reads, writes, sreads=(), mfma_c=None, mfma_d=None):
        s = self.s
        need = 0
        def req(tw, n):
            nonlocal need
            need = max(need, n - (s.t - tw))
        for r in reads:
            if r in s.mfma_w:
                req(s.mfma_w[r][0], 8)
            if kind in ("valu", "permlane", "readlane") and r in s.trans_w:
                req(s.trans_w[r], 1)
            if kind == "permlane" and r in s.valu_w: req(s.valu_w[r], 2)
            if kind == "readlane" and r in s.valu_w: req(s.valu_w[r], 1)
        for r in writes:
            if kind != "mfma":
                if r in s.mfma_w: req(s.mfma_w[r][0], 8)
            if kind in ("valu", "trans", "permlane"):
                if r in s.mfma_c: req(s.mfma_c[r], 3)
                if r in s.store_r: req(s.store_r[r], 2)
            else:
                if r in s.store_r: req(s.store_r[r], 1)
        for k in sreads:
            if k in s.sg_valu_w:
                if kind in ("valu", "trans"): req(s.sg_valu_w[k], 2)
                elif kind == "vmem": req(s.sg_valu_w[k], 5)
                elif kind == "readlane": req(s.sg_valu_w[k], 4)
                elif kind == "salu": req(s.sg_valu_w[k], 1)
        return need
    def _mark(self, kind, reads, writes, swrites=(), mfma_c=None):
        s = self.s
        t = s.t
        for r in writes:
            s.valu_w.pop(r, None); s.trans_w.pop(r, None); s.mfma_w.pop(r, None)
            if kind in ("valu", "permlane"): s.valu_w[r] = t
            elif kind == "trans": s.valu_w[r] = t; s.trans_w[r] = t
            elif kind == "mfma": s.mfma_w[r] = (t, writes[0])
        if mfma_c:
            for r in mfma_c: s.mfma_c[r] = t
        for k in swrites:
            s.sg_valu_w[k] = t
    def valu(self, txt, w=(), r=(), kind="valu", sr_=(), sw=()):
        w = list(w); r = list(r)
        self._wait_regs(w + r)
        self._pad(self._haz(kind, r, w, sreads=sr_))
        self.raw(txt)
        self._mark(kind, r, w, swrites=sw)
    def trans(self, txt, w=(), r=()):
        self.valu(txt, w, r, kind="trans")
    def salu(self, txt, sr_=(), m0=False):
        self._pad(self._haz("salu", [], [], sreads=sr_))
        self.raw(txt)
        if m0: self.s.m0_w = self.s.t
    def mfma(self, d, a, b, c):
        D = R(d, 4); A = R(a, 4); B = R(b, 4); C = R(c, 4) if c is not None else []
        self._wait_regs(D + A + B + C)
        s = self.s
        need = 0
        for r in A + B:
            if r in s.mfma_w: need = max(need, 8 - (s.t - s.mfma_w[r][0]))
            if r in s.valu_w: need = max(need, 2 - (s.t - s.valu_w[r]))
        for r in C:
            if r in s.mfma_w and s.mfma_w[r][1] != c: need = max(need, 6 - (s.t - s.mfma_w[r][0]))
            if r in s.valu_w: need = max(need, 2 - (s.t - s.valu_w[r]))
        for r in D:
            if r in s.store_r: need = max(need, 2 - (s.t - s.store_r[r]))
            if r in s.mfma_w and c != d: need = max(need, 6 - (s.t - s.mfma_w[r][0]))
        self._pad(need)
        cs = vr(c, 4) if c is not None else "0"
        self.raw(f"v_mfma_f32_16x16x32_bf16 {vr(d,4)}, {vr(a,4)}, {vr(b,4)}, {cs}", kind="mfma")
        self._mark("mfma", A + B + C, D, mfma_c=C)
    def _cap_lgkm(self):
        if len(self.s.lgkm) >= 15:
            self._wait(-1, len(self.s.lgkm) - 15)
    def _cap_vm(self):
        if len(self.s.vm) >= 63:
            self._wait(len(self.s.vm) - 63, -1)
    def ds_read(self, op, d, n, addr, off=0, lds=None, own=False):
        D = R(d, n)
        self._wait_regs(D + [addr])
        self._cap_lgkm()
        self._pad(self._haz("ds", [addr], D))
        o = f" offset:{off}" if off else ""
        self.raw(f"{op} {vr(d,n)}, {vr(addr)}{o}")
        self._mark("ds", [addr], D)
        self.s.lgkm.append(frozenset(D + self._lds_access("r", lds, f"{op} off {off}", own)))
    def ds_write(self, op, addr, src, n, off=0, lds=None, own=False):
        S = R(src, n)
        self._wait_regs(S + [addr])
        self._cap_lgkm()
        self._pad(self._haz("ds", S + [addr], []))
        o = f" offset:{off}" if off else ""
        self.raw(f"{op} {vr(addr)}, {vr(src,n)}{o}")
        self.s.lgkm.append(frozenset(self._lds_access("w", lds, f"{op} off {off}", own)))
    def buf_load(self, d, n, voff, srd, soff, off=0, flags="", tag=None):
        D = R(d, n)
        self._wait_regs(D + [voff])
        self._cap_vm()
        self._pad(self._haz("vmem", [voff], D, sreads=[soff] if isinstance(soff, int) else []))
        op = {1: "buffer_load_dword", 2: "buffer_load_dwordx2", 4: "buffer_load_dwordx4"}[n]
        so = sr(soff) if isinstance(soff, int) else soff
        o = f" offset:{off}" if off else ""
        self.raw(f"{op} {vr(d,n)}, {vr(voff)}, {sr(srd,4)}, {so} offen{o}{flags}")
        self._mark("vmem", [voff], D)
        self.s.vm.append((tag, frozenset(D)))
    def dma(self, voff, srd, soff, off=0, flags="", tag=None, lds=None):
        self._wait_regs([voff])
        self._cap_vm()
        need = self._haz("vmem", [voff], [], sreads=[soff] if isinstance(soff, int) else [])
        need = max(need, 1 - (self.s.t - self.s.m0_w))
        self._pad(need)
        so = sr(soff) if isinstance(soff, int) else soff
        o = f" offset:{off}" if off else ""
        self.raw(f"buffer_load_dwordx4 {vr(voff)}, {sr(srd,4)}, {so} offen{o}{flags} lds", kind="dma")
        self.s.vm.append((tag, frozenset(self._lds_access("w", lds, f"dma {tag}"))))
    def buf_store(self, src, n, voff, srd, soff, off=0, flags="", tag=None):
        S = R(src, n)
        self._wait_regs(S + [voff])
        self._cap_vm()
        self._pad(self._haz("vmem", S + [voff], [], sreads=[soff] if isinstance(soff, int) else []))
        op = {1: "buffer_store_dword", 2: "buffer_store_dwordx2", 4: "buffer_store_dwordx4"}[n]
        so = sr(soff) if isinstance(soff, int) else soff
        o = f" offset:{off}" if off else ""
        self.raw(f"{op} {vr(src,n)}, {vr(voff)}, {sr(srd,4)}, {so} offen{o}{flags}")
        if n >= 3:
            for r in S: self.s.store_r[r] = self.s.t
        self.s.vm.append((tag, frozenset()))
    def barrier(self):
        self.raw("s_barrier")
        self.s.epoch += 1
    def snapshot(self):
        return copy.deepcopy(self.s)
    def restore(self, st):
        self.s = copy.deepcopy(st)
    def merge(self, a, b):
        T = max(a.t, b.t)
        m = State(); m.t = T
        def md(da, db, tup=False):
            out = {}
            for k in set(da) | set(db):
                ages = []
                val = None
                for d, st in ((da, a), (db, b)):
                    if k in d:
                        tt = d[k][0] if tup else d[k]
                        ages.append(st.t - tt)
                        val = d[k]
                age = min(ages)
                if tup:
                    bases = {d[k][1] for d in (da, db) if k in d}
                    out[k] = (T - age, val[1] if len(bases) == 1 else -1)
                else:
                    out[k] = T - age
            return out
        m.valu_w = md(a.valu_w, b.valu_w); m.trans_w = md(a.trans_w, b.trans_w)
        m.mfma_w = md(a.mfma_w, b.mfma_w, True); m.mfma_c = md(a.mfma_c, b.mfma_c)
        m.store_r = md(a.store_r, b.store_r); m.sg_valu_w = md(a.sg_valu_w, b.sg_valu_w)
        m.m0_w = T - min(a.t - a.m0_w, b.t - b.m0_w)
        la, lb = a.lgkm, b.lgkm
        lo, sh = (la, lb) if len(la) >= len(lb) else (lb, la)
        assert lo[len(lo) - len(sh):] == sh, ("lgkm mismatch", la, lb)
        m.lgkm = list(lo)
        va, vb = a.vm, b.vm
        lo, sh = (va, vb) if len(va) >= len(vb) else (vb, va)
        assert lo[len(lo) - len(sh):] == sh, ("vm mismatch", va, vb)
        m.vm = list(lo)
        assert a.epoch == b.epoch and a.opid == b.opid, (a.epoch, b.epoch, a.opid, b.opid)
        m.epoch = a.epoch; m.opid = dict(a.opid)
        for nm in ("lw", "lr"):
            ta, tb = getattr(a, nm), getattr(b, nm)
            out = {}
            for oid in set(ta) | set(tb):
                xs = [t[oid] for t in (ta, tb) if oid in t]
                x = list(xs[0])
                des = [y[2] for y in xs]
                x[2] = None if None in des else max(des)
                out[oid] = x
            setattr(m, nm, out)
        self.s = m
    def variant(self, cond_cmp, taken_fn, fall_fn):
        lab = self.newlabel("VAR")
        self.salu(cond_cmp)
        self.raw(f"s_cbranch_scc1 {lab}_t")
        st = self.snapshot()
        fall_fn()
        sa = self.snapshot()
        self.label(f"{lab}_j")
        main = self.lines
        self.lines = self.cold
        self.restore(st)
        self.label(f"{lab}_t")
        taken_fn()
        self.raw(f"s_branch {lab}_j")
        sb = self.snapshot()
        self.lines = main
        self.merge(sa, sb)
    def text(self):
        return "\n".join(self.lines + self.cold) + "\n"
```

```python
import sys, math, struct
sys.path.insert(0, "gen")
from em import Em, vr, sr, R

NAME = "concat_heads__mha_block_cached__gqa_block_cached__near_ridge"
def f32(x):
    return struct.unpack("<I", struct.pack("<f", x))[0]
CSCALE = math.log2(math.e) / math.sqrt(128.0)

VREG_V = 0
VREG_K = 40960
HS = 8192
KVSLOT = [4, 0, 1, 2, 3]
WS_O = 0
WS_P = 2 * 1152 * 4096 * 2

class Alloc:
    def __init__(self, start=0, limit=256):
        self.n = start; self.limit = limit
    def get(self, n, align=1):
        self.n = (self.n + align - 1) // align * align
        b = self.n; self.n += n
        assert self.n <= self.limit, ("out of regs", self.n)
        return b

def emit_segment(e, mf, pinned, spread):
    for c in pinned.get(-1, []): c()
    W = sum(w for _, w in spread)
    nM = len(mf)
    k = 0; cum = 0.0
    for i, m in enumerate(mf):
        m()
        for c in pinned.get(i, []): c()
        tgt = W * (i + 1) / nM
        while k < len(spread) and cum + spread[k][1] * 0.5 <= tgt:
            spread[k][0](); cum += spread[k][1]; k += 1
    while k < len(spread):
        spread[k][0](); k += 1

class Stream:
    def __init__(self, e, FR):
        self.e = e; self.FR = FR
        self.frags = []
        self.bars = {}
        self.prebar = {}
        self.atf = {}
    def place(self, F, items, start=1, stride=3):
        for k, c in enumerate(items):
            self.atf.setdefault(F - self.BD + start + k * stride, []).append(c)
    def slot(self, f):
        return self.FR + 4 * (f % 8)
    def add(self, reads):
        self.frags.append(reads); return len(self.frags) - 1
    def read(self, f):
        for (op, ro, n, addr, imm, rng) in self.frags[f]:
            self.e.ds_read(op, self.slot(f) + ro, n, addr, imm, lds=rng)
    MERGE = 0
    LA = 7
    BD = 5
    def start(self):
        for n in range(min(self.LA, len(self.frags))):
            assert not (n > 0 and n in self.bars)
            self.read(n)
    def after(self, f):
        e = self.e
        out = []; post = []
        N = len(self.frags)
        F = f + self.BD
        if F in self.bars and F < N:
            tag, pst = self.bars[F]
            def bar(tag=tag, F=F):
                if F in self.prebar: self.prebar[F]()
                e.wait_vm_tag(tag, also_lgkm0=True)
                e.barrier()
            out.append(bar)
            for x in range(F, f + self.LA + 1):
                if x < N: out.append(lambda x=x: self.read(x))
            post = pst
        else:
            nf = f + self.LA
            if nf < N and not any((nf - k) in self.bars for k in range(self.LA - self.BD)):
                out.append(lambda nf=nf: self.read(nf))
        out = out + self.atf.get(f, [])
        return out, post

def wfrag_reads(AW, i, base):
    a = AW[i]
    rg = (base, base + HS)
    return [("ds_read_b64_tr_b16", 0, 2, a, base, rg), ("ds_read_b64_tr_b16", 2, 2, a, base + 1024, rg)]
def kfrag_reads(AK, t, s, base):
    return [("ds_read_b128", 0, 4, AK[s], base + 1024 * t, (VREG_K + base, VREG_K + base + HS))]

def seg_from_stream(st, f0, uses, extra_pinned=None):
    mf = []; pinned = {}
    postq = []
    for f in range(f0, f0 + 8):
        u = uses(f, st.slot(f))
        if Stream.MERGE and f % Stream.MERGE == 0:
            def first(m=u[0], f=f):
                regs = []
                for k in range(Stream.MERGE):
                    if f + k < len(st.frags): regs += R(st.slot(f + k), 4)
                st.e._wait_regs(regs)
                m()
            u = [first] + u[1:]
        for m in u:
            mf.append(m)
            if postq:
                pinned.setdefault(len(mf) - 1, []).append(postq.pop(0))
        a, post = st.after(f)
        pinned.setdefault(len(mf) - 1, []).extend(a)
        postq.extend(post)
    assert not postq
    return mf, pinned

def lane_setup(e, T, sW):
    lane, g, j, t0 = T, T + 1, T + 2, T + 3
    e.valu(f"v_lshrrev_b32 {vr(t0)}, 6, v0", w=[t0], r=[0])
    e.valu(f"v_and_b32 {vr(lane)}, 63, v0", w=[lane], r=[0])
    e.valu(f"v_readfirstlane_b32 {sr(sW)}, {vr(t0)}", r=[t0], kind="readlane", sw=[sW])
    e.valu(f"v_lshrrev_b32 {vr(g)}, 4, {vr(lane)}", w=[g], r=[lane])
    e.valu(f"v_and_b32 {vr(j)}, 15, {vr(lane)}", w=[j], r=[lane])
    return lane, g, j

def w_addr_setup(e, T, g, j, AW, sS):
    rp, cp, f, b0 = T + 3, T + 4, T + 5, T + 6
    e.valu(f"v_lshrrev_b32 {vr(rp)}, 2, {vr(j)}", w=[rp], r=[j])
    e.valu(f"v_and_b32 {vr(cp)}, 3, {vr(j)}", w=[cp], r=[j])
    e.valu(f"v_and_b32 {vr(f)}, 1, {vr(rp)}", w=[f], r=[rp])
    e.valu(f"v_and_b32 {vr(b0)}, 2, {vr(rp)}", w=[b0], r=[rp])
    e.valu(f"v_lshl_or_b32 {vr(f)}, {vr(b0)}, 1, {vr(f)}", w=[f], r=[b0, f])
    e.valu(f"v_and_b32 {vr(b0)}, 1, {vr(g)}", w=[b0], r=[g])
    e.valu(f"v_lshl_or_b32 {vr(f)}, {vr(b0)}, 3, {vr(f)}", w=[f], r=[b0, f])
    e.valu(f"v_xor_b32 {vr(f)}, {vr(f)}, {vr(cp)}", w=[f], r=[f, cp])
    e.valu(f"v_lshlrev_b32 {vr(f)}, 4, {vr(f)}", w=[f], r=[f])
    e.valu(f"v_and_b32 {vr(cp)}, 1, {vr(cp)}", w=[cp], r=[cp])
    e.valu(f"v_lshl_or_b32 {vr(f)}, {vr(cp)}, 3, {vr(f)}", w=[f], r=[cp, f])
    e.valu(f"v_lshl_add_u32 {vr(b0)}, {vr(g)}, 3, {vr(rp)}", w=[b0], r=[g, rp])
    e.valu(f"v_lshl_or_b32 {vr(b0)}, {vr(b0)}, 8, {vr(f)}", w=[b0], r=[b0, f])
    for s in range(4):
        e.valu(f"v_xor_b32 {vr(AW[2*s])}, {sr(sS+s)}, {vr(b0)}", w=[AW[2*s]], r=[b0])
        e.valu(f"v_xor_b32 {vr(AW[2*s+1])}, 8, {vr(AW[2*s])}", w=[AW[2*s+1]], r=[AW[2*s]])

def w_dma_chunk(e, T, g, j, sW, dst):
    f, b0, rho = T + 3, T + 4, T + 5
    e.valu(f"v_and_b32 {vr(f)}, 1, {vr(g)}", w=[f], r=[g])
    e.valu(f"v_and_b32 {vr(b0)}, 2, {vr(g)}", w=[b0], r=[g])
    e.valu(f"v_lshl_or_b32 {vr(f)}, {vr(b0)}, 1, {vr(f)}", w=[f], r=[b0, f])
    e.valu(f"v_mov_b32 {vr(rho)}, {sr(sW)}", w=[rho], sr_=[sW])
    e.valu(f"v_and_b32 {vr(b0)}, 1, {vr(rho)}", w=[b0], r=[rho])
    e.valu(f"v_lshl_or_b32 {vr(f)}, {vr(b0)}, 3, {vr(f)}", w=[f], r=[b0, f])
    e.valu(f"v_xor_b32 {vr(f)}, {vr(f)}, {vr(j)}", w=[f], r=[f, j])
    e.valu(f"v_lshlrev_b32 {vr(dst)}, 4, {vr(f)}", w=[dst], r=[f])
    e.valu(f"v_lshl_add_u32 {vr(rho)}, {vr(rho)}, 3, {vr(g)}", w=[rho], r=[rho, g])
    return rho

def srd(e, d, lo, hi, nbytes):
    e.salu(f"s_mov_b32 {sr(d)}, {sr(lo)}")
    e.salu(f"s_and_b32 {sr(d+1)}, {sr(hi)}, 0xffff")
    e.salu(f"s_mov_b32 {sr(d+2)}, {nbytes}")
    e.salu(f"s_mov_b32 {sr(d+3)}, 0x20000")
def srd_sel(e, d, a, b, nbytes):
    e.salu(f"s_cselect_b32 {sr(d)}, {sr(b)}, {sr(a)}")
    e.salu(f"s_cselect_b32 {sr(d+1)}, {sr(b+1)}, {sr(a+1)}")
    e.salu(f"s_mov_b32 {sr(d+2)}, {nbytes}")
    e.salu(f"s_mov_b32 {sr(d+3)}, 0x20000")

def xlane_reduce(e, op, x, t):
    e.valu(f"v_mov_b32 {vr(t)}, {vr(x)}", w=[t], r=[x])
    e.valu(f"v_permlane16_swap_b32 {vr(x)}, {vr(t)}", w=[x, t], r=[x, t], kind="permlane")
    e.valu(f"{op} {vr(x)}, {vr(x)}, {vr(t)}", w=[x], r=[x, t])
    e.valu(f"v_mov_b32 {vr(t)}, {vr(x)}", w=[t], r=[x])
    e.valu(f"v_permlane32_swap_b32 {vr(x)}, {vr(t)}", w=[x, t], r=[x, t], kind="permlane")
    e.valu(f"{op} {vr(x)}, {vr(x)}, {vr(t)}", w=[x], r=[x, t])

def pack_pair(e, dst, a, b, scale=None):
    pass

def set_exec_odd(e):
    e.salu("s_mov_b32 exec_lo, 0xffff0000")
    e.salu("s_mov_b32 exec_hi, 0xffff0000")
def set_exec_all(e):
    e.salu("s_mov_b64 exec, -1")

WS_STAMP = 128 << 20
class Stamps:
    def __init__(self, e, on, base=78, maxn=12):
        self.e = e; self.on = on; self.base = base; self.n = 0; self.maxn = maxn; self.names = []; self.keep = ()
    def __call__(self, name, real=False):
        if not self.on or self.n >= self.maxn or name not in self.keep: return
        e = self.e
        e.wait_all(vm=False)
        real = name not in ("start", "end")
        e.raw(f"{'s_memrealtime' if real else 's_memtime'} {sr(self.base + 2*self.n, 2)}")
        e.raw("s_waitcnt lgkmcnt(0)")
        self.names.append(name); self.n += 1
    def flush(self, wslo, sW, vt, srdb):
        if not self.on: return
        e = self.e
        srd(e, srdb, wslo, wslo + 1, 0x10000000)
        e.salu(f"s_lshl_b32 s3, s2, 2")
        e.salu(f"s_add_u32 s3, s3, {sr(sW)}")
        e.salu(f"s_lshl_b32 s3, s3, 7")
        e.salu(f"s_add_u32 s3, s3, {WS_STAMP}")
        e.valu(f"v_mov_b32 {vr(vt+1)}, 0", w=[vt+1])
        e.salu("s_mov_b64 exec, 1")
        for i in range(self.n):
            e.valu(f"v_mov_b32 {vr(vt)}, {sr(self.base + 2*i)}", w=[vt])
            e.buf_store(vt, 1, vt + 1, srdb, 3, 4 * i)
            e.wait_all()
        e.salu("s_mov_b64 exec, -1")
        print("stamps:", self.names)

def kernel_wrap(name, body, nv, ns=102):
    return f""".text
.globl {name}
.p2align 8
.type {name},@function
{name}:
{body}
.section .rodata,"a"
.p2align 6
.amdhsa_kernel {name}
  .amdhsa_next_free_vgpr {nv}
  .amdhsa_next_free_sgpr {ns}
  .amdhsa_accum_offset {(nv+3)//4*4}
  .amdhsa_group_segment_fixed_size 0
  .amdhsa_kernarg_size 104
  .amdhsa_user_sgpr_count 2
  .amdhsa_user_sgpr_kernarg_segment_ptr 1
  .amdhsa_system_sgpr_workgroup_id_x 1
.end_amdhsa_kernel
"""

def gemm_phase(e, st, nk, AW, ACC0, ACC1, ACC2, XP, wslot, post_for_bundle, seg_spread, after_first=None, stamp=None):
    assert len(st.frags) == 0
    for ks in range(nk):
        b = ks // 2
        base = (VREG_K if ks % 2 == 0 else VREG_V) + wslot(b) * HS
        for i in range(8):
            f = st.add(wfrag_reads(AW, i, base))
            if i == 0 and ks % 2 == 0 and ks > 0:
                pb = post_for_bundle(b)
                if isinstance(pb, tuple):
                    st.place(f, pb[1], 1, pb[2]); pb = pb[0]
                st.bars[f] = (("W", b), pb)
    e.wait_vm_tag(("W", 0))
    e.barrier()
    if stamp: stamp("w0")
    if after_first: after_first()
    st.start()
    for ks in range(nk):
        if stamp: stamp(f"qk{ks}")
        def uses(f, fr, ks=ks):
            i = f % 8
            first = ks == 0
            u = [lambda: e.mfma(ACC0 + 4*i, fr, XP(ks, 0), None if first else ACC0 + 4*i),
                 lambda: e.mfma(ACC1 + 4*i, fr, XP(ks, 1), None if first else ACC1 + 4*i)]
            if i < 2:
                u.append(lambda: e.mfma(ACC2 + 4*i, fr, XP(ks, 2), None if first else ACC2 + 4*i))
            return u
        mf, pinned = seg_from_stream(st, ks * 8, uses)
        emit_segment(e, mf, pinned, seg_spread(ks))

WS_F1 = 64 << 20
WS_F2 = WS_F1 + 65536
def phase_o(e, opts, stamp, C):
    sW, sW2048, sB, sBr, sHG, sHL, sRT, sOUT, sT0, sT1 = (C[k] for k in "sW sW2048 sB sBr sHG sHL sRT sOUT sT0 sT1".split())
    lane, g, j, T = C["lane"], C["g"], C["j"], C["T"]
    SWO, SXO, SWS, SOUT = 4, 8, 12, 16
    sBB, sWoff, sX, sRot, sWb, sNT, sF, sXo, sCnt, sW4096 = 58 + 0, 26, 29, 67, 27, 32, 28, 64, 65, 66
    sBBr = 63
    A = Alloc(0, T)
    AC = [A.get(16, 4), A.get(16, 4), A.get(4, 4)]
    FR = A.get(32, 4)
    NXB = opts.get('nxb', 4)
    XB = A.get(NXB * 32, 4)
    XS = A.get(32, 4)
    A4 = [A.get(1) for _ in range(4)]
    A4b = [A.get(1) for _ in range(4)]
    VW = [A.get(1) for _ in range(4)]
    VX = A.get(1); VXSr = A.get(1)
    t3, t4, t5, t6 = T + 3, T + 4, T + 5, T + 6
    NSL = opts.get('onsl', 4); NB = 8
    WSL = 16384; XSB = 65536
    LF = {0: "", 1: " sc1", 2: " sc0 sc1", 3: " nt"}[opts.get("lf", 1)]
    LFX = {0: "", 1: " sc1", 2: " sc0"}[opts.get("lfx", 1)]
    WOF = " nt" if opts.get("wont", 0) else ""
    def wave0_exec(mask):
        e.salu(f"s_cmp_eq_u32 {sr(sW)}, 0")
        e.salu(f"s_cselect_b32 exec_lo, {mask}, 0")
        e.salu(f"s_mov_b32 exec_hi, 0")
    def publish(sOff):
        e.wait_all()
        e.barrier()
        e.valu(f"v_mov_b32 {vr(t5)}, {sr(sRT)}", w=[t5])
        e.valu(f"v_mov_b32 {vr(t6)}, 0", w=[t6])
        wave0_exec(1)
        e.buf_store(t5, 1, t6, SWS, sOff, flags=" sc1")
        set_exec_all(e)
    def poll(sOff, nfl, name):
        e.salu(f"s_cmp_lg_u32 {sr(sW)}, 0")
        e.raw(f"s_cbranch_scc1 {name}_done")
        st0 = e.snapshot()
        e.valu(f"v_lshlrev_b32 {vr(t6)}, 2, {vr(lane)}", w=[t6], r=[lane])
        e.salu(f"s_mov_b32 {sr(sCnt)}, 0")
        e.salu(f"s_mov_b64 exec, {(1 << nfl) - 1}")
        e.label(f"{name}_loop")
        e.raw(f"buffer_load_dword {vr(t5)}, {vr(t6)}, {sr(SWS, 4)}, {sr(sOff)} offen sc1")
        e.raw("s_waitcnt vmcnt(0)")
        e.raw(f"v_cmp_ne_u32 vcc, {sr(sRT)}, {vr(t5)}")
        e.raw(f"s_add_u32 {sr(sCnt)}, {sr(sCnt)}, 1")
        e.raw("s_nop 3")
        e.raw(f"s_cbranch_vccz {name}_ok")
        e.raw(f"s_sleep {opts.get('sleep', 4)}")
        e.raw(f"s_cmp_lt_u32 {sr(sCnt)}, 0x200000")
        e.raw(f"s_cbranch_scc1 {name}_loop")
        e.label(f"{name}_ok")
        set_exec_all(e)
        e.label(f"{name}_done")
        e.restore(st0)
        e.s.t += 1
        e.barrier()
    e.salu(f"s_lshl_b32 {sr(sT0)}, {sr(sBr)}, 3")
    e.salu(f"s_add_u32 {sr(sBBr)}, {sr(sB)}, {sr(sT0)}")
    e.salu(f"s_cmp_eq_u32 {sr(sBr)}, 1")
    srd_sel(e, SWO, 44, 54, 4096 * 512 * 2)
    srd(e, SXO, 56, 57, 2 * 1152 * 4096 * 2)
    srd(e, SWS, 56, 57, 0x10000000)
    srd(e, SOUT, sOUT, sOUT + 1, 8 * 144 * 1024 * 2)
    e.salu(f"s_lshl_b32 {sr(sF)}, {sr(sBBr)}, 2")
    e.salu(f"s_add_u32 {sr(sF)}, {sr(sF)}, {sr(sHG)}")
    e.salu(f"s_lshl_b32 {sr(sF)}, {sr(sF)}, 6")
    e.salu(f"s_add_u32 {sr(sF)}, {sr(sF)}, {WS_F1}")
    e.salu(f"s_lshl_b32 {sr(sT0)}, {sr(sHL)}, 2")
    e.salu(f"s_add_u32 {sr(sT1)}, {sr(sF)}, {sr(sT0)}")
    publish(sT1)
    if opts.get("prio"): e.raw(f"s_setprio {opts.get('oprio', 0)}")
    stamp("pub1")
    if opts.get("oexp") == "noph": return
    e.salu(f"s_lshl_b32 {sr(sWoff)}, {sr(sHG)}, 20")
    e.salu(f"s_lshl_b32 {sr(sT0)}, {sr(sHL)}, 7")
    e.salu(f"s_add_u32 {sr(sWoff)}, {sr(sWoff)}, {sr(sT0)}")
    e.salu(f"s_lshl_b32 {sr(sW4096)}, {sr(sW)}, 12")
    e.salu(f"s_lshl_b32 {sr(sRot)}, {sr(sB)}, 1")
    if opts.get("orot", 1) == 2: e.salu(f"s_mov_b32 {sr(sRot)}, 0")
    e.salu(f"s_add_u32 {sr(sRot)}, {sr(sRot)}, {sr(sHL)}")
    if opts.get("orot", 1) == 0: e.salu(f"s_mov_b32 {sr(sRot)}, 0")
    e.valu(f"v_lshrrev_b32 {vr(t3)}, 3, {vr(lane)}", w=[t3], r=[lane])
    e.valu(f"v_bfe_u32 {vr(t4)}, {vr(lane)}, 4, 1", w=[t4], r=[lane])
    e.salu(f"s_and_b32 {sr(sT0)}, {sr(sW)}, 1")
    e.salu(f"s_lshl_b32 {sr(sT0)}, {sr(sT0)}, 2")
    e.valu(f"v_or_b32 {vr(t4)}, {sr(sT0)}, {vr(t4)}", w=[t4], r=[t4])
    e.valu(f"v_and_b32 {vr(t5)}, 7, {vr(lane)}", w=[t5], r=[lane])
    e.valu(f"v_xor_b32 {vr(t4)}, {vr(t4)}, {vr(t5)}", w=[t4], r=[t4, t5])
    e.valu(f"v_lshlrev_b32 {vr(t4)}, 4, {vr(t4)}", w=[t4], r=[t4])
    e.valu(f"v_lshl_add_u32 {vr(t4)}, {vr(t3)}, 10, {vr(t4)}", w=[t4], r=[t3, t4])
    e.salu(f"s_lshl_b32 {sr(sT0)}, {sr(sW)}, 13")
    e.valu(f"v_add_u32 {vr(VW[0])}, {sr(sT0)}, {vr(t4)}", w=[VW[0]], r=[t4])
    for k in range(1, 4):
        e.valu(f"v_add_u32 {vr(VW[k])}, {k*(32768-1024)}, {vr(VW[0])}", w=[VW[k]], r=[VW[0]])
    def issue_w(b):
        sl = b % NSL; tg = ("WO", b)
        def c0():
            e.salu(f"s_add_u32 {sr(sT0)}, {sr(sRot)}, {b}")
            e.salu(f"s_and_b32 {sr(sT0)}, {sr(sT0)}, 7")
            e.salu(f"s_lshl_b32 {sr(sWb)}, {sr(sT0)}, 17")
            e.salu(f"s_add_u32 {sr(sWb)}, {sr(sWb)}, {sr(sWoff)}")
            e.salu(f"s_add_u32 m0, {sr(sW4096)}, {sl*WSL}", m0=True)
            for k in range(2):
                e.dma(VW[k], SWO, sWb, 1024 * k, flags=WOF, tag=tg, lds=(sl*WSL + 4096*k, sl*WSL + 4096*k + 4096))
        def c1():
            for k in range(2, 4):
                e.dma(VW[k], SWO, sWb, 1024 * k, flags=WOF, tag=tg, lds=(sl*WSL + 4096*k, sl*WSL + 4096*k + 4096))
        if opts.get("oexp") == "nowo": return []
        return [c0, c1]
    def issue_xs(b):
        sl = b % NSL; tg = ("WO", b)
        def c():
            e.salu(f"s_add_u32 {sr(sT0)}, {sr(sRot)}, {b}")
            e.salu(f"s_and_b32 {sr(sT0)}, {sr(sT0)}, 7")
            e.salu(f"s_lshl_b32 {sr(sT0)}, {sr(sT0)}, 12")
            e.salu(f"s_add_u32 {sr(sT0)}, {sr(sT0)}, {sr(sX+2)}")
            e.salu(f"s_lshr_b32 {sr(sT1)}, {sr(sW2048)}, 1")
            e.salu(f"s_add_u32 m0, {sr(sT1)}, {XSB + sl*4096}", m0=True)
            e.dma(VX, SXO, sT0, 0, flags=LFX, tag=tg, lds=(XSB + sl*4096, XSB + sl*4096 + 4096))
        return [c]
    def XP(ks, t):
        b = ks // 4
        return XB + (b % NXB) * 32 + (ks % 4) * 8 + 4 * t if t < 2 else XS + (b % 2) * 16 + (ks % 4) * 4
    def load_x(b, t):
        if t == 0:
            e.salu(f"s_add_u32 {sr(sXo)}, {sr(sRot)}, {b}")
            e.salu(f"s_and_b32 {sr(sXo)}, {sr(sXo)}, 7")
            e.salu(f"s_lshl_b32 {sr(sXo)}, {sr(sXo)}, 12")
        e.salu(f"s_add_u32 s3, {sr(sXo)}, {sr(sX+t)}")
        if opts.get("oexp") == "nox": return
        for k in range(4):
            e.buf_load(XP(4*b + k, t), 4, VX, SXO, 3, 1024 * k, flags=LFX)
    def read_xs(b):
        sl = b % NSL
        for k in range(4):
            e.ds_read("ds_read_b128", XP(4*b + k, 2), 4, VXSr, sl*4096 + 1024*k, lds=(XSB + sl*4096, XSB + sl*4096 + 4096))
    if opts.get("odelay"):
        e.salu(f"s_cmp_lg_u32 {sr(sW)}, 0")
        e.raw("s_cbranch_scc1 ODL_done")
        e.raw(f"s_lshl_b32 {sr(sT0)}, {sr(sHL)}, 2")
        e.raw(f"s_add_u32 {sr(sT0)}, {sr(sT0)}, {sr(sF)}")
        e.raw(f"s_add_u32 {sr(sT0)}, {sr(sT0)}, {16*64 + (opts['odelay'] - 1) * 32768}")
        e.raw(f"v_mov_b32 {vr(t6)}, 0")
        e.raw("s_mov_b64 exec, 1")
        e.raw(f"s_mov_b32 {sr(sCnt)}, 0")
        e.label("ODL_loop")
        e.raw(f"buffer_load_dword {vr(t5)}, {vr(t6)}, {sr(SWS, 4)}, {sr(sT0)} offen sc1")
        e.raw("s_waitcnt vmcnt(0)")
        e.raw(f"v_cmp_ne_u32 vcc, {sr(sRT)}, {vr(t5)}")
        e.raw(f"s_add_u32 {sr(sCnt)}, {sr(sCnt)}, 1")
        e.raw("s_nop 3")
        e.raw("s_cbranch_vccz ODL_ok")
        e.raw("s_sleep 8")
        e.raw(f"s_cmp_lt_u32 {sr(sCnt)}, 0x100000")
        e.raw("s_cbranch_scc1 ODL_loop")
        e.label("ODL_ok")
        e.raw("s_mov_b64 exec, -1")
        e.label("ODL_done")
        e.barrier()
    for b in range(NSL):
        for c in issue_w(b): c()
    e.salu(f"s_mul_i32 {sr(sT0)}, {sr(sBBr)}, 9")
    e.salu(f"s_lshl_b32 {sr(sT1)}, {sr(sW)}, 1")
    e.salu(f"s_add_u32 {sr(sX)}, {sr(sT0)}, {sr(sT1)}")
    e.salu(f"s_add_u32 {sr(sX+1)}, {sr(sX)}, 1")
    e.salu(f"s_add_u32 {sr(sX+2)}, {sr(sT0)}, 8")
    e.salu(f"s_lshl_b32 {sr(sT0)}, {sr(sHG)}, 15")
    for t in range(3):
        e.salu(f"s_lshl_b32 {sr(sX+t)}, {sr(sX+t)}, 17")
        e.salu(f"s_add_u32 {sr(sX+t)}, {sr(sX+t)}, {sr(sT0)}")
    e.salu(f"s_lshr_b32 {sr(sT1)}, {sr(sW2048)}, 1")
    e.salu(f"s_add_u32 {sr(sX+2)}, {sr(sX+2)}, {sr(sT1)}")
    e.valu(f"v_lshlrev_b32 {vr(VX)}, 4, {vr(lane)}", w=[VX], r=[lane])
    e.valu(f"v_add_u32 {vr(VXSr)}, {XSB}, {vr(VX)}", w=[VXSr], r=[VX])
    rp, cp = t3, t4
    e.valu(f"v_lshrrev_b32 {vr(rp)}, 2, {vr(j)}", w=[rp], r=[j])
    e.valu(f"v_and_b32 {vr(cp)}, 3, {vr(j)}", w=[cp], r=[j])
    e.valu(f"v_lshrrev_b32 {vr(t5)}, 1, {vr(rp)}", w=[t5], r=[rp])
    e.valu(f"v_and_b32 {vr(t6)}, 1, {vr(g)}", w=[t6], r=[g])
    e.valu(f"v_lshl_or_b32 {vr(t5)}, {vr(t6)}, 2, {vr(t5)}", w=[t5], r=[t6, t5])
    e.valu(f"v_xor_b32 {vr(t5)}, {vr(t5)}, {vr(cp)}", w=[t5], r=[t5, cp])
    e.valu(f"v_lshlrev_b32 {vr(t5)}, 4, {vr(t5)}", w=[t5], r=[t5])
    e.valu(f"v_and_b32 {vr(cp)}, 1, {vr(cp)}", w=[cp], r=[cp])
    e.valu(f"v_lshl_or_b32 {vr(t5)}, {vr(cp)}, 3, {vr(t5)}", w=[t5], r=[cp, t5])
    e.valu(f"v_lshl_or_b32 {vr(t5)}, {vr(rp)}, 7, {vr(t5)}", w=[t5], r=[rp, t5])
    e.valu(f"v_lshl_or_b32 {vr(t5)}, {vr(g)}, 12, {vr(t5)}", w=[t5], r=[g, t5])
    e.valu(f"v_lshl_or_b32 {vr(t5)}, {vr(t6)}, 9, {vr(t5)}", w=[t5], r=[t6, t5])
    for i in range(4):
        e.salu(f"s_add_u32 {sr(sNT+i)}, {sr(sW)}, {sr(sHG)}")
        e.salu(f"s_add_u32 {sr(sNT+i)}, {sr(sNT+i)}, {i}")
        e.salu(f"s_and_b32 {sr(sNT+i)}, {sr(sNT+i)}, 3")
        e.salu(f"s_lshr_b32 {sr(sT0)}, {sr(sNT+i)}, 1")
        e.salu(f"s_lshl_b32 {sr(sT0)}, {sr(sT0)}, 6")
        e.salu(f"s_and_b32 {sr(sT1)}, {sr(sNT+i)}, 1")
        e.salu(f"s_lshl_b32 {sr(sT1)}, {sr(sT1)}, 3")
        e.salu(f"s_or_b32 {sr(sT0)}, {sr(sT0)}, {sr(sT1)}")
        e.valu(f"v_xor_b32 {vr(A4[i])}, {sr(sT0)}, {vr(t5)}", w=[A4[i]], r=[t5])
        e.valu(f"v_xor_b32 {vr(A4b[i])}, 0x200, {vr(A4[i])}", w=[A4b[i]], r=[A4[i]])
    PROG = opts.get("prog", 1)
    PD = opts.get("pd", 1)
    sRdy, sNeed = 59, 60
    def ensure(ks_, name, sleep=0):
        e.salu(f"s_cmp_lg_u32 {sr(sW)}, 0")
        e.raw(f"s_cbranch_scc1 {name}_done")
        st0 = e.snapshot()
        m = sum(1 << k for k in ks_)
        e.raw(f"s_mov_b32 {sr(sCnt)}, 0")
        e.label(f"{name}_loop")
        e.raw(f"s_and_b32 {sr(sT0)}, {sr(sRdy)}, {m}")
        e.raw(f"s_cmp_eq_u32 {sr(sT0)}, {m}")
        e.raw(f"s_cbranch_scc1 {name}_done")
        e.raw(f"s_mov_b64 exec, 0xff")
        e.raw(f"buffer_load_dword {vr(t5)}, {vr(VFL)}, {sr(SWS, 4)}, {sr(sF)} offen sc1")
        e.raw("s_waitcnt vmcnt(0)")
        e.raw(f"v_cmp_eq_u32 vcc, {sr(sRT)}, {vr(t5)}")
        e.raw(f"s_add_u32 {sr(sCnt)}, {sr(sCnt)}, 1")
        e.raw("s_mov_b64 exec, -1")
        e.raw("s_nop 1")
        e.raw(f"s_mov_b32 {sr(sRdy)}, vcc_lo")
        sleep = sleep or opts.get('esleep', 0)
        if sleep: e.raw(f"s_sleep {sleep}")
        e.raw(f"s_cmp_lt_u32 {sr(sCnt)}, 0x200000")
        e.raw(f"s_cbranch_scc1 {name}_loop")
        e.label(f"{name}_done")
        e.restore(st0)
        e.s.t += 1
    if PROG:
        assert opts.get("orot") == 2 and NXB == 2
        VFL = A.get(1)
        e.valu(f"v_add_u32 {vr(VFL)}, {sr(sHL)}, {vr(lane)}", w=[VFL], r=[lane])
        e.valu(f"v_and_b32 {vr(VFL)}, 7, {vr(VFL)}", w=[VFL], r=[VFL])
        e.valu(f"v_lshlrev_b32 {vr(VFL)}, 2, {vr(VFL)}", w=[VFL], r=[VFL])
        e.salu(f"s_mov_b32 {sr(sRdy)}, 0")
        for c in issue_xs(0): c()
        for t in range(2): load_x(0, t)
    else:
        poll(sF, 8, "POLL1")
        stamp("poll1")
        for b in range(max(NSL, NXB)):
            if b < NSL:
                for c in issue_xs(b): c()
            if b < NXB:
                for t in range(2): load_x(b, t)
    st = Stream(e, FR)
    for ks in range(32):
        b = ks // 4
        base = (b % NSL) * WSL + (ks % 4) * 1024
        rg = ((b % NSL) * WSL, (b % NSL) * WSL + WSL)
        for i in range(4):
            f = st.add([("ds_read_b64_tr_b16", 0, 2, A4[i], base, rg), ("ds_read_b64_tr_b16", 2, 2, A4b[i], base, rg)])
            if i == 0 and ks % 4 == 0 and ks > 0:
                nb = b + NSL - 1
                if PROG:
                    st.bars[f] = (("WO", b), [lambda b=b: read_xs(b)] + (issue_xs(b + PD) if b + PD < NB else []) + (issue_w(nb) if nb < NB else []))
                    if b + PD < NB: st.prebar[f] = lambda b=b: ensure([b + PD], f"ENS{b}")
                else:
                    st.bars[f] = (("WO", b), [lambda b=b: read_xs(b)] + ((issue_w(nb) + issue_xs(nb)) if nb < NB else []))
    stamp("oiss")
    if PROG: ensure(list(range(1, PD + 1)), "ENS0")
    e.wait_vm_tag(("WO", 0))
    e.barrier()
    if PROG:
        stamp("poll1")
        for c in issue_xs(1) + (issue_xs(2) if PD == 2 else []): c()
        for t in range(2): load_x(1, t)
    stamp("o0")
    read_xs(0)
    st.start()
    for sg in range(16):
        if sg in (2, 4, 8, 12): stamp(f"og{sg}")
        def uses(f, fr):
            ks = f // 4; i = f % 4
            first = ks == 0
            u = [lambda: e.mfma(AC[0] + 4*i, fr, XP(ks, 0), None if first else AC[0] + 4*i),
                 lambda: e.mfma(AC[1] + 4*i, fr, XP(ks, 1), None if first else AC[1] + 4*i)]
            if i == 0:
                u.append(lambda: e.mfma(AC[2], fr, XP(ks, 2), None if first else AC[2]))
            return u
        mf, pinned = seg_from_stream(st, sg * 8, uses)
        spread = []
        if sg % 2 == 0 and sg >= 2 and sg // 2 - 1 + NXB < NB:
            spread = [(lambda t=t, b=sg // 2 - 1 + NXB: load_x(b, t), 1) for t in range(2)]
        emit_segment(e, mf, pinned, spread)
    stamp("ogemm")
    sPb, sPs = sWoff, sWb
    e.salu(f"s_lshl_b32 {sr(sPb)}, {sr(sBBr)}, 3")
    e.salu(f"s_add_u32 {sr(sPb)}, {sr(sPb)}, {sr(sHL)}")
    e.salu(f"s_lshl_b32 {sr(sF)}, {sr(sPb)}, 6")
    e.salu(f"s_add_u32 {sr(sF)}, {sr(sF)}, {WS_F2}")
    e.salu(f"s_mul_i32 {sr(sPb)}, {sr(sPb)}, {16*9*1024}")
    e.salu(f"s_add_u32 {sr(sPb)}, {sr(sPb)}, {WS_P}")
    e.salu(f"s_mul_i32 {sr(sPs)}, {sr(sHG)}, {4*9*1024}")
    e.salu(f"s_add_u32 {sr(sPs)}, {sr(sPs)}, {sr(sPb)}")
    if opts.get("pdelay"):
        e.salu(f"s_lshl_b32 {sr(sF)}, {sr(sBBr)}, 2")
        e.salu(f"s_add_u32 {sr(sF)}, {sr(sF)}, {sr(sHG)}")
        e.salu(f"s_lshl_b32 {sr(sF)}, {sr(sF)}, 6")
        e.salu(f"s_add_u32 {sr(sF)}, {sr(sF)}, {WS_F1 + 16*64}")
        e.salu(f"s_mov_b32 {sr(sRdy)}, 0")
        ensure([0], "PDEL", sleep=opts["pdelay"])
        e.barrier()
    VP = XB
    e.valu(f"v_add_u32 {vr(VP)}, {sr(sW2048)}, {vr(VX)}", w=[VP], r=[VX])
    TAG = opts.get("tag", 1)
    PSF = " sc1 nt" if opts.get("psnt") else " sc1"
    vM, vTg = XB + 2, [XB + 3, XS]
    def tagq(a):
        if not TAG: return
        for r in range(4):
            e.valu(f"v_and_or_b32 {vr(a+r)}, {vr(a+r)}, {vr(vM)}, {vr(vTg[r&1])}", w=[a+r], r=[a+r, vM, vTg[r&1]])
    if TAG:
        e.valu(f"v_mov_b32 {vr(vM)}, 0xfffff000", w=[vM])
        e.salu(f"s_bfe_u32 {sr(sT0)}, {sr(sRT)}, 0xc0001")
        e.salu(f"s_bfe_u32 {sr(sT1)}, {sr(sRT)}, 0xc000d")
        e.valu(f"v_mov_b32 {vr(vTg[0])}, {sr(sT0)}", w=[vTg[0]])
        e.valu(f"v_mov_b32 {vr(vTg[1])}, {sr(sT1)}", w=[vTg[1]])
    for i in (1, 2, 3):
        e.salu(f"s_mul_i32 {sr(sT0)}, {sr(sNT+i)}, {9*1024}")
        e.salu(f"s_add_u32 {sr(sT0)}, {sr(sT0)}, {sr(sPs)}")
        for t in range(2):
            tagq(AC[t] + 4*i)
            e.buf_store(AC[t] + 4*i, 4, VP, SWS, sT0, 1024 * t, flags=PSF)
    e.salu(f"s_mul_i32 {sr(sXo)}, {sr(sNT)}, {9*1024}")
    e.salu(f"s_add_u32 {sr(sT0)}, {sr(sXo)}, {sr(sPs)}")
    e.salu(f"s_add_u32 {sr(sT0)}, {sr(sT0)}, {8*1024}")
    tagq(AC[2])
    e.buf_store(AC[2], 4, VX, SWS, sT0, 0, flags=PSF)
    stamp("pst")
    if not TAG:
        e.salu(f"s_lshl_b32 {sr(sT0)}, {sr(sHG)}, 2")
        e.salu(f"s_add_u32 {sr(sT1)}, {sr(sF)}, {sr(sT0)}")
        publish(sT1)
    stamp("pub2")
    VOo = XB + 1
    e.salu(f"s_and_b32 {sr(sT0)}, {sr(sNT)}, 1")
    e.valu(f"v_and_b32 {vr(t3)}, 1, {vr(g)}", w=[t3], r=[g])
    e.valu(f"v_xor_b32 {vr(t3)}, {sr(sT0)}, {vr(t3)}", w=[t3], r=[t3])
    e.valu(f"v_lshlrev_b32 {vr(t3)}, 3, {vr(t3)}", w=[t3], r=[t3])
    e.valu(f"v_lshl_or_b32 {vr(t3)}, {vr(g)}, 4, {vr(t3)}", w=[t3], r=[g, t3])
    e.valu(f"v_lshl_or_b32 {vr(VOo)}, {vr(j)}, 11, {vr(t3)}", w=[VOo], r=[j, t3])
    sOo = sRot
    e.salu(f"s_mul_i32 {sr(sOo)}, {sr(sB)}, {144*2048}")
    e.salu(f"s_lshl_b32 {sr(sT0)}, {sr(sBr)}, 10")
    e.salu(f"s_add_u32 {sr(sOo)}, {sr(sOo)}, {sr(sT0)}")
    e.salu(f"s_lshl_b32 {sr(sT0)}, {sr(sHL)}, 7")
    e.salu(f"s_add_u32 {sr(sOo)}, {sr(sOo)}, {sr(sT0)}")
    e.salu(f"s_lshr_b32 {sr(sT0)}, {sr(sNT)}, 1")
    e.salu(f"s_lshl_b32 {sr(sT0)}, {sr(sT0)}, 6")
    e.salu(f"s_add_u32 {sr(sOo)}, {sr(sOo)}, {sr(sT0)}")
    if not TAG: poll(sF, 4, "POLL2")
    PB = XB + 4
    if TAG:
        pv = XS + 4
        e.valu(f"v_add_u32 {vr(pv)}, {sr(sHG)}, {vr(lane)}", w=[pv], r=[lane])
        e.valu(f"v_add_u32 {vr(pv)}, 1, {vr(pv)}", w=[pv], r=[pv])
        e.valu(f"v_and_b32 {vr(pv)}, 3, {vr(pv)}", w=[pv], r=[pv])
        e.valu(f"v_add_u32 {vr(pv+1)}, {sr(sW)}, {vr(pv)}", w=[pv+1], r=[pv])
        e.valu(f"v_and_b32 {vr(pv+1)}, 3, {vr(pv+1)}", w=[pv+1], r=[pv+1])
        e.valu(f"v_lshl_add_u32 {vr(pv)}, {vr(pv)}, 2, {vr(pv+1)}", w=[pv], r=[pv, pv+1])
        e.valu(f"v_mul_u32_u24 {vr(pv)}, {9*1024}, {vr(pv)}", w=[pv], r=[pv])
        e.valu(f"v_add_u32 {vr(pv)}, {8*1024 + 1008}, {vr(pv)}", w=[pv], r=[pv])
        e.valu(f"v_and_b32 {vr(AC[2])}, {vr(AC[2])}, {vr(vM)}", w=[AC[2]], r=[AC[2], vM])
        for r in range(1, 4):
            e.valu(f"v_and_b32 {vr(AC[2]+r)}, {vr(AC[2]+r)}, {vr(vM)}", w=[AC[2]+r], r=[AC[2]+r, vM])
        if opts.get("t2skip", 1):
            for d in range(3):
                for r in range(4):
                    e.valu(f"v_mov_b32 {vr(PB + d*12 + 8 + r)}, {vr(vTg[r&1])}", w=[PB + d*12 + 8 + r], r=[vTg[r&1]])
        e.salu(f"s_mov_b32 {sr(sCnt)}, 0")
        e.salu("s_mov_b64 exec, 7")
        e.label("QLOOP")
        e.raw(f"buffer_load_dword {vr(pv+1)}, {vr(pv)}, {sr(SWS, 4)}, {sr(sPb)} offen sc1")
        e.raw("s_waitcnt vmcnt(0)")
        e.raw(f"v_xor_b32 {vr(pv+1)}, {vr(pv+1)}, {vr(vTg[0])}")
        e.raw(f"v_and_b32 {vr(pv+1)}, 0xfff, {vr(pv+1)}")
        e.raw(f"v_cmp_ne_u32 vcc, 0, {vr(pv+1)}")
        e.raw(f"s_add_u32 {sr(sCnt)}, {sr(sCnt)}, 1")
        e.raw("s_nop 3")
        e.raw("s_cbranch_vccz QDONE")
        e.raw(f"s_sleep {opts.get('psleep', 4)}")
        e.raw(f"s_cmp_lt_u32 {sr(sCnt)}, 0x100000")
        e.raw("s_cbranch_scc1 QLOOP")
        e.label("QDONE")
        set_exec_all(e)
        e.wait_all(force=True)
        e.label("PLOOP")
    for d in (1, 2, 3):
        e.salu(f"s_add_u32 {sr(sT0)}, {sr(sHG)}, {d}")
        e.salu(f"s_and_b32 {sr(sT0)}, {sr(sT0)}, 3")
        e.salu(f"s_mul_i32 {sr(sT0)}, {sr(sT0)}, {4*9*1024}")
        e.salu(f"s_add_u32 {sr(sT0)}, {sr(sT0)}, {sr(sPb)}")
        e.salu(f"s_add_u32 {sr(sT0)}, {sr(sT0)}, {sr(sXo)}")
        for t in range(2):
            e.buf_load(PB + (d-1)*12 + 4*t, 4, VP, SWS, sT0, 1024 * t, flags=LF)
        e.salu(f"s_add_u32 {sr(sT0)}, {sr(sT0)}, {8*1024}")
        if opts.get("t2skip", 1):
            e.salu(f"s_cmp_eq_u32 {sr(sW)}, 0")
            e.salu(f"s_cselect_b64 exec, -1, 0")
        e.buf_load(PB + (d-1)*12 + 8, 4, VX, SWS, sT0, 0, flags=LF)
        if opts.get("t2skip", 1): set_exec_all(e)
    if TAG:
        acc = XS + 1; y = XS + 2
        for k in range(18):
            a, b = PB + 2*k, PB + 2*k + 1
            e.valu(f"v_xor_b32 {vr(y)}, {vr(a)}, {vr(vTg[0])}", w=[y], r=[a, vTg[0]])
            e.valu(f"v_xor_b32 {vr(y+1)}, {vr(b)}, {vr(vTg[1])}", w=[y+1], r=[b, vTg[1]])
            if k == 0: e.valu(f"v_or_b32 {vr(acc)}, {vr(y)}, {vr(y+1)}", w=[acc], r=[y, y+1])
            else: e.valu(f"v_or3_b32 {vr(acc)}, {vr(acc)}, {vr(y)}, {vr(y+1)}", w=[acc], r=[acc, y, y+1])
        e.valu(f"v_and_b32 {vr(acc)}, 0xfff, {vr(acc)}", w=[acc], r=[acc])
        e.valu(f"v_cmp_ne_u32 vcc, 0, {vr(acc)}", r=[acc], sw=["vcc"])
        e.salu(f"s_add_u32 {sr(sCnt)}, {sr(sCnt)}, 1")
        e.nop(3)
        e.raw("s_cbranch_vccz PDONE")
        e.salu(f"s_cmp_lt_u32 {sr(sCnt)}, 0x100000")
        e.raw("s_cbranch_scc1 PLOOP")
        e.label("PDONE")
    stamp("poll2")
    for t in range(3):
        for d in range(3):
            for r in range(4):
                a = AC[t] + r; p = PB + d*12 + 4*t + r
                if TAG: e.valu(f"v_and_b32 {vr(p)}, {vr(p)}, {vr(vM)}", w=[p], r=[p, vM])
                e.valu(f"v_add_f32 {vr(a)}, {vr(a)}, {vr(p)}", w=[a], r=[a, p])
        for k in range(2):
            a = AC[t]
            e.valu(f"v_cvt_pk_bf16_f32 {vr(a+k)}, {vr(a+2*k)}, {vr(a+2*k+1)}", w=[a+k], r=[a+2*k, a+2*k+1])
        if t < 2:
            e.salu(f"s_lshl_b32 {sr(sT0)}, {sr(sW)}, 16")
            e.salu(f"s_add_u32 {sr(sT0)}, {sr(sT0)}, {sr(sOo)}")
            if t: e.salu(f"s_add_u32 {sr(sT0)}, {sr(sT0)}, {16*2048}")
            e.buf_store(AC[t], 2, VOo, SOUT, sT0)
        else:
            e.salu(f"s_add_u32 {sr(sT0)}, {sr(sOo)}, {128*2048}")
            e.salu(f"s_cmp_eq_u32 {sr(sW)}, 0")
            e.salu(f"s_cselect_b64 exec, -1, 0")
            e.buf_store(AC[t], 2, VOo, SOUT, sT0)
            set_exec_all(e)

WS_P2 = 40 << 20
def phase_o2(e, opts, stamp, C):
    sW, sW2048, sB, sBr, sHG, sHL, sRT, sOUT, sT0, sT1, sEX, sNQ = (C[k] for k in "sW sW2048 sB sBr sHG sHL sRT sOUT sT0 sT1 sEX sTk".split())
    lane, g, j, T = C["lane"], C["g"], C["j"], C["T"]
    SWO, SXO, SWS, SOUT = 4, 8, 12, 16
    sWoff, sX, sWh, sS, sF, sXh, sCnt, sU = 26, 29, 27, 32, 28, 64, 65, 66
    sBBr, sRdy, sDone, sTile = 63, 59, 67, 40
    A = Alloc(0, T)
    AC = [A.get(32, 4), A.get(32, 4), A.get(8, 4)]
    FR = A.get(32, 4)
    NXP = 8
    XB = A.get(NXP * 8, 4)
    XS2 = A.get(8, 4)
    AWa = [A.get(1) for _ in range(8)]
    AWb = [A.get(1) for _ in range(8)]
    VW0 = A.get(1); VW1 = A.get(1); VX = A.get(1); VFL = A.get(1); VCH = A.get(1); VZ = A.get(1)
    VXT = [A.get(1) for _ in range(3)]
    TT = A.get(8)
    t3, t4, t5, t6 = T + 3, T + 4, T + 5, T + 6
    NSL = 3; NB = 16
    XSH2 = VREG_V + 3 * HS; CH = VREG_V + 4 * HS
    LF = " sc1"
    def XP(ks, t): return XB + ((ks % NXP) * 2 + t) * 4 if t < 2 else XS2 + 4 * (ks & 1)
    e.salu(f"s_lshl_b32 {sr(sT0)}, {sr(sBr)}, 3")
    e.salu(f"s_add_u32 {sr(sBBr)}, {sr(sB)}, {sr(sT0)}")
    e.salu(f"s_cmp_eq_u32 {sr(sBr)}, 1")
    srd_sel(e, SWO, 44, 54, 4096 * 512 * 2)
    srd(e, SXO, 56, 57, 2 * 1152 * 4096 * 2)
    srd(e, SWS, 56, 57, 0x10000000)
    srd(e, SOUT, sOUT, sOUT + 1, 8 * 144 * 1024 * 2)
    e.salu(f"s_lshl_b32 {sr(sF)}, {sr(sBBr)}, 2")
    e.salu(f"s_add_u32 {sr(sF)}, {sr(sF)}, {sr(sHG)}")
    e.salu(f"s_lshl_b32 {sr(sF)}, {sr(sF)}, 6")
    e.salu(f"s_add_u32 {sr(sF)}, {sr(sF)}, {WS_F1}")
    e.salu(f"s_lshl_b32 {sr(sT0)}, {sr(sHL)}, 2")
    e.salu(f"s_add_u32 {sr(sT1)}, {sr(sF)}, {sr(sT0)}")
    rho = w_dma_chunk(e, TT - 3, g, j, sW, VW0)
    e.valu(f"v_lshl_add_u32 {vr(VW0)}, {vr(rho)}, 10, {vr(VW0)}", w=[VW0], r=[rho, VW0])
    e.valu(f"v_add_u32 {vr(VW1)}, {4*1024-1024}, {vr(VW0)}", w=[VW1], r=[VW0])
    e.valu(f"v_lshlrev_b32 {vr(VX)}, 4, {vr(lane)}", w=[VX], r=[lane])
    e.valu(f"v_lshlrev_b32 {vr(VFL)}, 2, {vr(lane)}", w=[VFL], r=[lane])
    e.valu(f"v_mov_b32 {vr(VZ)}, 0", w=[VZ])
    e.salu(f"s_lshl_b32 {sr(sWoff)}, {sr(sHG)}, 20")
    e.salu(f"s_lshl_b32 {sr(sT0)}, {sr(sNQ)}, 8")
    e.salu(f"s_add_u32 {sr(sWoff)}, {sr(sWoff)}, {sr(sT0)}")
    e.salu(f"s_mul_i32 {sr(sT0)}, {sr(sBBr)}, 9")
    e.salu(f"s_lshl_b32 {sr(sX+2)}, {sr(sW)}, 1")
    e.salu(f"s_add_u32 {sr(sX)}, {sr(sT0)}, {sr(sX+2)}")
    e.salu(f"s_add_u32 {sr(sX+1)}, {sr(sX)}, 1")
    e.salu(f"s_add_u32 {sr(sX+2)}, {sr(sT0)}, 8")
    e.salu(f"s_lshl_b32 {sr(sT0)}, {sr(sHG)}, 15")
    for t in range(3):
        e.salu(f"s_lshl_b32 {sr(sX+t)}, {sr(sX+t)}, 17")
        e.salu(f"s_add_u32 {sr(sX+t)}, {sr(sX+t)}, {sr(sT0)}")
    e.salu(f"s_lshr_b32 {sr(sU)}, {sr(sW)}, 1")
    e.salu(f"s_lshl_b32 {sr(sU)}, {sr(sU)}, 10")
    e.salu(f"s_add_u32 {sr(sX+2)}, {sr(sX+2)}, {sr(sU)}")
    for t in range(3):
        e.valu(f"v_add_u32 {vr(VXT[t])}, {sr(sX+t)}, {vr(VX)}", w=[VXT[t]], r=[VX])
    e.wait_all()
    e.barrier()
    e.valu(f"v_mov_b32 {vr(t5)}, {sr(sRT)}", w=[t5])
    e.salu(f"s_cmp_eq_u32 {sr(sW)}, 0")
    e.salu(f"s_cselect_b32 exec_lo, 1, 0")
    e.salu(f"s_mov_b32 exec_hi, 0")
    e.buf_store(t5, 1, VZ, SWS, sT1, flags=" sc1")
    set_exec_all(e)
    if opts.get("prio"): e.raw(f"s_setprio {opts.get('oprio', 0)}")
    stamp("pub1")
    e.salu(f"s_cmp_ge_u32 {sr(sNQ)}, 4")
    e.raw("s_cbranch_scc1 O2_EXIT")
    def set_head(sreg):
        e.salu(f"s_lshl_b32 {sr(sWh)}, {sr(sreg)}, 17", sr_=[sreg])
        e.salu(f"s_add_u32 {sr(sWh)}, {sr(sWh)}, {sr(sWoff)}")
        e.salu(f"s_lshl_b32 {sr(sXh)}, {sr(sreg)}, 12")
    def issue_w(b):
        sl = b % NSL; tg = ("WO", b)
        out = []
        for h in range(2):
            base = (VREG_K if h == 0 else VREG_V) + sl * HS
            def c0(base=base, h=h):
                e.salu(f"s_add_u32 m0, {sr(sW2048)}, {base}", m0=True)
                e.dma(VW0, SWO, sWh, 0, tag=tg, lds=(base, base + 4096))
                e.dma(VW1, SWO, sWh, 1024, tag=tg, lds=(base + 4096, base + 8192))
                e.salu(f"s_add_u32 {sr(sWh)}, {sr(sWh)}, {32*1024}")
            out.append(c0)
        return out
    def issue_xs(b):
        sl = b % NSL; tg = ("WO", b)
        def c():
            e.salu(f"s_add_u32 m0, {sr(sU)}, {XSH2 + 2048*sl - 2048*(b & 1)}", m0=True)
            e.salu(f"s_mov_b64 exec, {sr(sEX, 2)}")
            e.dma(VXT[2], SXO, sXh, 2048 * (b & 1), flags=LF, tag=tg, lds=(XSH2 + 2048*sl, XSH2 + 2048*sl + 2048))
            e.salu("s_mov_b64 exec, -1")
        return [c]
    def xitems(b):
        return [lambda k=k, t=t: e.buf_load(XP(2*b + k, t), 4, VXT[t], SXO, sXh, 2048 * (b & 1) + 1024 * k, flags=LF) for k in range(2) for t in range(2)]
    def read_xs(ks):
        sl = (ks // 2) % NSL
        e.ds_read("ds_read_b128", XP(ks, 2), 4, VX, XSH2 + 2048*sl + 1024*(ks & 1), lds=(XSH2 + 2048*sl, XSH2 + 2048*sl + 2048))
    def choose(i):
        nm = f"CH{i}"
        e.salu(f"s_cmp_lg_u32 {sr(sW)}, 0")
        e.raw(f"s_cbranch_scc1 {nm}_done")
        st0 = e.snapshot()
        e.raw(f"s_mov_b32 {sr(sCnt)}, 0")
        e.label(f"{nm}_loop")
        e.raw(f"s_andn2_b32 {sr(sT0)}, {sr(sRdy)}, {sr(sDone)}")
        e.raw(f"s_cbranch_scc1 {nm}_ok")
        e.raw(f"s_mov_b64 exec, 0xff")
        e.raw(f"buffer_load_dword {vr(t5)}, {vr(VFL)}, {sr(SWS, 4)}, {sr(sF)} offen sc1")
        e.raw("s_waitcnt vmcnt(0)")
        e.raw(f"v_cmp_eq_u32 vcc, {sr(sRT)}, {vr(t5)}")
        e.raw(f"s_add_u32 {sr(sCnt)}, {sr(sCnt)}, 1")
        e.raw("s_mov_b64 exec, -1")
        e.raw("s_nop 1")
        e.raw(f"s_mov_b32 {sr(sRdy)}, vcc_lo")
        e.raw(f"s_andn2_b32 {sr(sT0)}, {sr(sRdy)}, {sr(sDone)}")
        e.raw(f"s_cbranch_scc1 {nm}_ok")
        if opts.get("esleep"): e.raw(f"s_sleep {opts['esleep']}")
        e.raw(f"s_cmp_lt_u32 {sr(sCnt)}, 0x200000")
        e.raw(f"s_cbranch_scc1 {nm}_loop")
        e.raw(f"s_andn2_b32 {sr(sT0)}, 0xff, {sr(sDone)}")
        e.label(f"{nm}_ok")
        e.raw(f"s_ff1_i32_b32 {sr(sT0)}, {sr(sT0)}")
        e.raw(f"s_bitset1_b32 {sr(sDone)}, {sr(sT0)}")
        e.raw(f"v_mov_b32 {vr(t5)}, {sr(sT0)}")
        e.raw(f"ds_write_b32 {vr(VZ)}, {vr(t5)} offset:{CH + 4*(i & 1)}")
        e.raw("s_waitcnt lgkmcnt(0)")
        e.label(f"{nm}_done")
        e.restore(st0); e.s.t += 1
    def get_choice(i):
        def a(): e.ds_read("ds_read_b32", VCH, 1, VZ, CH + 4 * (i & 1))
        def b():
            e.valu(f"v_readfirstlane_b32 {sr(sT1)}, {vr(VCH)}", r=[VCH], kind="readlane", sw=[sT1])
            set_head(sT1)
        return [a, b]
    set_head(sHL)
    for b in range(2):
        for c in issue_w(b) + issue_xs(b) + xitems(b): c()
    e.salu(f"s_mov_b32 {sr(sRdy)}, 0")
    e.salu(f"s_lshl_b32 {sr(sDone)}, 1, {sr(sHL)}")
    for s_ in range(4):
        e.salu(f"s_add_u32 {sr(sS+s_)}, {sr(sW)}, {sr(sHG)}")
        e.salu(f"s_add_u32 {sr(sS+s_)}, {sr(sS+s_)}, {s_}")
        e.salu(f"s_and_b32 {sr(sS+s_)}, {sr(sS+s_)}, 3")
        e.salu(f"s_lshl_b32 {sr(sS+s_)}, {sr(sS+s_)}, 6")
    w_addr_setup(e, TT - 3, g, j, AWa, sS)
    e.valu(f"v_and_b32 {vr(t3)}, 1, {vr(g)}", w=[t3], r=[g])
    e.valu(f"v_lshlrev_b32 {vr(t3)}, 10, {vr(t3)}", w=[t3], r=[t3])
    for i in range(8):
        e.valu(f"v_xor_b32 {vr(AWa[i])}, {vr(AWa[i])}, {vr(t3)}", w=[AWa[i]], r=[AWa[i], t3])
        e.valu(f"v_xor_b32 {vr(AWb[i])}, 0x400, {vr(AWa[i])}", w=[AWb[i]], r=[AWa[i]])
    st = Stream(e, FR)
    for ks in range(32):
        b = ks // 2
        base = (VREG_K if ks % 2 == 0 else VREG_V) + (b % NSL) * HS
        rg = (base, base + HS)
        for i in range(8):
            st.add([("ds_read_b64_tr_b16", 0, 2, AWa[i], base, rg), ("ds_read_b64_tr_b16", 2, 2, AWb[i], base, rg)])
    def after_bar(b):
        items = []
        if b + 2 < NB:
            if b % 2 == 0: items += get_choice(b // 2 + 1)
            items += issue_xs(b + 2) + issue_w(b + 2) + xitems(b + 2)
        return items
    for b in range(1, NB):
        F = 16 * b
        its = after_bar(b)
        st.bars[F] = (("WO", b), [lambda b=b: read_xs(2 * b)] + its[:1])
        for k, c in enumerate(its[1:]):
            st.atf.setdefault(F - st.BD + 2 + k, []).append(c)
        if b % 2 == 0 and b + 2 < NB:
            st.prebar[F] = lambda b=b: choose(b // 2 + 1)
    choose(1)
    e.wait_vm_tag(("WO", 0))
    e.barrier()
    stamp("poll1")
    read_xs(0)
    its0 = after_bar(0)
    its0[0]()
    st.start()
    for k, c in enumerate(its0[1:]):
        st.atf.setdefault(k, []).append(c)
    for ks in range(32):
        def uses(f, fr, ks=ks):
            i = f % 8
            first = ks == 0
            u = [lambda: e.mfma(AC[0] + 4*i, fr, XP(ks, 0), None if first else AC[0] + 4*i),
                 lambda: e.mfma(AC[1] + 4*i, fr, XP(ks, 1), None if first else AC[1] + 4*i)]
            if i < 2:
                u.append(lambda: e.mfma(AC[2] + 4*i, fr, XP(ks, 2), None if first else AC[2] + 4*i))
            return u
        mf, pinned = seg_from_stream(st, ks * 8, uses)
        spread = [(lambda ks=ks: read_xs(ks + 1), 1)] if ks % 2 == 0 else []
        emit_segment(e, mf, pinned, spread)
    stamp("ogemm")
    sPb, sPs, sXo = sWoff, sWh, sXh
    e.salu(f"s_lshl_b32 {sr(sTile)}, {sr(sBr)}, 2")
    e.salu(f"s_add_u32 {sr(sTile)}, {sr(sTile)}, {sr(sB)}")
    e.salu(f"s_sub_u32 {sr(sTile)}, {sr(sTile)}, 4")
    e.salu(f"s_lshl_b32 {sr(sTile)}, {sr(sTile)}, 2")
    e.salu(f"s_add_u32 {sr(sTile)}, {sr(sTile)}, {sr(sNQ)}")
    e.salu(f"s_mul_i32 {sr(sPb)}, {sr(sTile)}, {16*18*1024}")
    e.salu(f"s_add_u32 {sr(sPb)}, {sr(sPb)}, {WS_P2}")
    e.salu(f"s_mul_i32 {sr(sPs)}, {sr(sHG)}, {4*18*1024}")
    e.salu(f"s_add_u32 {sr(sPs)}, {sr(sPs)}, {sr(sPb)}")
    VP, VP2, vM, vTg, VOo, pv, acc, y = AWa[0], AWa[1], AWa[2], [AWa[3], AWa[4]], AWa[5], AWa[6], AWb[0], AWb[1]
    e.salu(f"s_lshl_b32 {sr(sT0)}, {sr(sW)}, 12")
    e.valu(f"v_add_u32 {vr(VP)}, {sr(sT0)}, {vr(VX)}", w=[VP], r=[VX])
    e.valu(f"v_add_u32 {vr(VP2)}, 16384, {vr(VX)}", w=[VP2], r=[VX])
    e.valu(f"v_mov_b32 {vr(vM)}, 0xfffff000", w=[vM])
    e.salu(f"s_bfe_u32 {sr(sT0)}, {sr(sRT)}, 0xc0001")
    e.salu(f"s_bfe_u32 {sr(sT1)}, {sr(sRT)}, 0xc000d")
    e.valu(f"v_mov_b32 {vr(vTg[0])}, {sr(sT0)}", w=[vTg[0]])
    e.valu(f"v_mov_b32 {vr(vTg[1])}, {sr(sT1)}", w=[vTg[1]])
    def tagq(a, d=None):
        d = a if d is None else d
        for r in range(4):
            e.valu(f"v_and_or_b32 {vr(d+r)}, {vr(a+r)}, {vr(vM)}, {vr(vTg[r&1])}", w=[d+r], r=[a+r, vM, vTg[r&1]])
    for s_ in (1, 2, 3):
        e.salu(f"s_mul_i32 {sr(sT0)}, {sr(sS+s_)}, {18*1024//64}")
        e.salu(f"s_add_u32 {sr(sT0)}, {sr(sT0)}, {sr(sPs)}")
        for t in range(2):
            for ee in range(2):
                a = AC[t] + 4 * (2*s_ + ee)
                tagq(a)
                e.buf_store(a, 4, VP, SWS, sT0, 2048 * t + 1024 * ee, flags=" sc1")
    e.salu(f"s_mul_i32 {sr(sXo)}, {sr(sS)}, {18*1024//64}")
    e.salu(f"s_add_u32 {sr(sT0)}, {sr(sXo)}, {sr(sPs)}")
    for ee in range(2):
        tagq(AC[2] + 4*ee, FR + 4*ee)
        e.buf_store(FR + 4*ee, 4, VP2, SWS, sT0, 1024 * ee, flags=" sc1")
    e.valu(f"v_lshlrev_b32 {vr(VOo)}, 11, {vr(j)}", w=[VOo], r=[j])
    e.valu(f"v_lshl_or_b32 {vr(VOo)}, {vr(g)}, 4, {vr(VOo)}", w=[VOo], r=[g, VOo])
    sOo = sDone
    e.salu(f"s_mul_i32 {sr(sOo)}, {sr(sB)}, {144*2048}")
    e.salu(f"s_lshl_b32 {sr(sT0)}, {sr(sBr)}, 10")
    e.salu(f"s_add_u32 {sr(sOo)}, {sr(sOo)}, {sr(sT0)}")
    e.salu(f"s_lshl_b32 {sr(sT0)}, {sr(sNQ)}, 8")
    e.salu(f"s_add_u32 {sr(sOo)}, {sr(sOo)}, {sr(sT0)}")
    e.salu(f"s_add_u32 {sr(sOo)}, {sr(sOo)}, {sr(sS)}")
    e.valu(f"v_add_u32 {vr(pv)}, {sr(sHG)}, {vr(lane)}", w=[pv], r=[lane])
    e.valu(f"v_add_u32 {vr(pv)}, 1, {vr(pv)}", w=[pv], r=[pv])
    e.valu(f"v_and_b32 {vr(pv)}, 3, {vr(pv)}", w=[pv], r=[pv])
    e.valu(f"v_add_u32 {vr(pv+1)}, {sr(sW)}, {vr(pv)}", w=[pv+1], r=[pv])
    e.valu(f"v_and_b32 {vr(pv+1)}, 3, {vr(pv+1)}", w=[pv+1], r=[pv+1])
    e.valu(f"v_lshl_add_u32 {vr(pv)}, {vr(pv)}, 2, {vr(pv+1)}", w=[pv], r=[pv, pv+1])
    e.valu(f"v_mul_u32_u24 {vr(pv)}, {18*1024}, {vr(pv)}", w=[pv], r=[pv])
    e.valu(f"v_add_u32 {vr(pv)}, {17*1024 + 1008}, {vr(pv)}", w=[pv], r=[pv])
    PB = XB
    for d in range(3):
        for r in range(8):
            e.valu(f"v_mov_b32 {vr(PB + d*24 + 16 + r)}, {vr(vTg[r&1])}", w=[PB + d*24 + 16 + r], r=[vTg[r&1]])
    e.salu(f"s_mov_b32 {sr(sCnt)}, 0")
    e.salu("s_mov_b64 exec, 7")
    e.label("Q2LOOP")
    e.raw(f"buffer_load_dword {vr(pv+1)}, {vr(pv)}, {sr(SWS, 4)}, {sr(sPb)} offen sc1")
    e.raw("s_waitcnt vmcnt(0)")
    e.raw(f"v_xor_b32 {vr(pv+1)}, {vr(pv+1)}, {vr(vTg[0])}")
    e.raw(f"v_and_b32 {vr(pv+1)}, 0xfff, {vr(pv+1)}")
    e.raw(f"v_cmp_ne_u32 vcc, 0, {vr(pv+1)}")
    e.raw(f"s_add_u32 {sr(sCnt)}, {sr(sCnt)}, 1")
    e.raw("s_nop 3")
    e.raw("s_cbranch_vccz Q2DONE")
    e.raw(f"s_sleep {opts.get('psleep', 4)}")
    e.raw(f"s_cmp_lt_u32 {sr(sCnt)}, 0x100000")
    e.raw("s_cbranch_scc1 Q2LOOP")
    e.label("Q2DONE")
    set_exec_all(e)
    e.wait_all(force=True)
    e.label("P2LOOP")
    for d in (1, 2, 3):
        e.salu(f"s_add_u32 {sr(sT0)}, {sr(sHG)}, {d}")
        e.salu(f"s_and_b32 {sr(sT0)}, {sr(sT0)}, 3")
        e.salu(f"s_mul_i32 {sr(sT0)}, {sr(sT0)}, {4*18*1024}")
        e.salu(f"s_add_u32 {sr(sT0)}, {sr(sT0)}, {sr(sPb)}")
        e.salu(f"s_add_u32 {sr(sT0)}, {sr(sT0)}, {sr(sXo)}")
        for q in range(4):
            e.buf_load(PB + (d-1)*24 + 4*q, 4, VP, SWS, sT0, 1024 * q, flags=LF)
        e.salu(f"s_cmp_eq_u32 {sr(sW)}, 0")
        e.salu(f"s_cselect_b64 exec, -1, 0")
        for q in range(2):
            e.buf_load(PB + (d-1)*24 + 16 + 4*q, 4, VP2, SWS, sT0, 1024 * q, flags=LF)
        set_exec_all(e)
    for k in range(36):
        a, b = PB + 2*k, PB + 2*k + 1
        e.valu(f"v_xor_b32 {vr(y)}, {vr(a)}, {vr(vTg[0])}", w=[y], r=[a, vTg[0]])
        e.valu(f"v_xor_b32 {vr(y+1)}, {vr(b)}, {vr(vTg[1])}", w=[y+1], r=[b, vTg[1]])
        if k == 0: e.valu(f"v_or_b32 {vr(acc)}, {vr(y)}, {vr(y+1)}", w=[acc], r=[y, y+1])
        else: e.valu(f"v_or3_b32 {vr(acc)}, {vr(acc)}, {vr(y)}, {vr(y+1)}", w=[acc], r=[acc, y, y+1])
    e.valu(f"v_and_b32 {vr(acc)}, 0xfff, {vr(acc)}", w=[acc], r=[acc])
    e.valu(f"v_cmp_ne_u32 vcc, 0, {vr(acc)}", r=[acc], sw=["vcc"])
    e.salu(f"s_add_u32 {sr(sCnt)}, {sr(sCnt)}, 1")
    e.nop(3)
    e.raw("s_cbranch_vccz P2DONE")
    e.salu(f"s_cmp_lt_u32 {sr(sCnt)}, 0x100000")
    e.raw("s_cbranch_scc1 P2LOOP")
    e.label("P2DONE")
    stamp("poll2")
    for t in range(3):
        A0 = AC[t]
        for d in range(3):
            for r in range(8):
                a = A0 + r; p = PB + d*24 + 8*t + r
                e.valu(f"v_and_b32 {vr(p)}, {vr(p)}, {vr(vM)}", w=[p], r=[p, vM])
                e.valu(f"v_add_f32 {vr(a)}, {vr(a)}, {vr(p)}", w=[a], r=[a, p])
        for k in range(4):
            e.valu(f"v_cvt_pk_bf16_f32 {vr(A0+k)}, {vr(A0+2*k)}, {vr(A0+2*k+1)}", w=[A0+k], r=[A0+2*k, A0+2*k+1])
        set_exec_odd(e)
        e.valu(f"v_swap_b32 {vr(A0)}, {vr(A0+2)}", w=[A0, A0+2], r=[A0, A0+2])
        e.valu(f"v_swap_b32 {vr(A0+1)}, {vr(A0+3)}", w=[A0+1, A0+3], r=[A0+1, A0+3])
        if t < 2:
            set_exec_all(e)
            e.salu(f"s_lshl_b32 {sr(sT0)}, {sr(sW)}, 16")
            e.salu(f"s_add_u32 {sr(sT0)}, {sr(sT0)}, {sr(sOo)}")
            if t: e.salu(f"s_add_u32 {sr(sT0)}, {sr(sT0)}, {16*2048}")
            e.buf_store(A0, 4, VOo, SOUT, sT0)
        else:
            e.salu(f"s_add_u32 {sr(sT0)}, {sr(sOo)}, {128*2048}")
            e.salu(f"s_cmp_eq_u32 {sr(sW)}, 0")
            e.salu(f"s_cselect_b64 exec, -1, 0")
            e.buf_store(A0, 4, VOo, SOUT, sT0)
            set_exec_all(e)
    e.label("O2_EXIT")

def phase_o3(e, opts, stamp, C):
    sW, sW2048, sB, sBr, sHG, sHL, sRT, sOUT, sT0, sT1, sEX, sNQ = (C[k] for k in "sW sW2048 sB sBr sHG sHL sRT sOUT sT0 sT1 sEX sTk".split())
    lane, g, j, T = C["lane"], C["g"], C["j"], C["T"]
    SWO, SXO, SWS, SOUT = 4, 8, 12, 16
    sWoff, sX, sWh, sS, sF, sXh, sCnt, sU = 26, 29, 27, 32, 28, 64, 65, 66
    sBBr, sRdy, sDone, sTile = 63, 59, 67, 40
    A = Alloc(0, T)
    AC = [A.get(32, 4), A.get(32, 4), A.get(8, 4)]
    FR = A.get(32, 4)
    NXP = 8
    XB = A.get(NXP * 8, 4)
    XS2 = A.get(8, 4)
    AWa = [A.get(1) for _ in range(8)]
    AWb = [A.get(1) for _ in range(8)]
    VW0 = A.get(1); VW1 = A.get(1); VX = A.get(1); VFL = A.get(1); VCH = A.get(1); VZ = A.get(1)
    VXT = [A.get(1) for _ in range(3)]
    TT = A.get(8)
    t3, t4, t5, t6 = T + 3, T + 4, T + 5, T + 6
    NSL = 3; NB = 8
    sKH = 41
    e.salu(f"s_and_b32 {sr(sNQ)}, {sr(sHL)}, 3")
    e.salu(f"s_lshr_b32 {sr(sKH)}, {sr(sHL)}, 2")
    XSH2 = VREG_V + 3 * HS; CH = VREG_V + 4 * HS
    LF = " sc1"
    def XP(ks, t): return XB + ((ks % NXP) * 2 + t) * 4 if t < 2 else XS2 + 4 * (ks & 1)
    e.salu(f"s_lshl_b32 {sr(sT0)}, {sr(sBr)}, 3")
    e.salu(f"s_add_u32 {sr(sBBr)}, {sr(sB)}, {sr(sT0)}")
    e.salu(f"s_cmp_eq_u32 {sr(sBr)}, 1")
    srd_sel(e, SWO, 44, 54, 4096 * 512 * 2)
    srd(e, SXO, 56, 57, 2 * 1152 * 4096 * 2)
    srd(e, SWS, 56, 57, 0x10000000)
    srd(e, SOUT, sOUT, sOUT + 1, 8 * 144 * 1024 * 2)
    e.salu(f"s_lshl_b32 {sr(sF)}, {sr(sBBr)}, 2")
    e.salu(f"s_add_u32 {sr(sF)}, {sr(sF)}, {sr(sHG)}")
    e.salu(f"s_lshl_b32 {sr(sF)}, {sr(sF)}, 6")
    e.salu(f"s_add_u32 {sr(sF)}, {sr(sF)}, {WS_F1}")
    e.salu(f"s_lshl_b32 {sr(sT0)}, {sr(sHL)}, 2")
    e.salu(f"s_add_u32 {sr(sT1)}, {sr(sF)}, {sr(sT0)}")
    rho = w_dma_chunk(e, TT - 3, g, j, sW, VW0)
    e.valu(f"v_lshl_add_u32 {vr(VW0)}, {vr(rho)}, 10, {vr(VW0)}", w=[VW0], r=[rho, VW0])
    e.valu(f"v_add_u32 {vr(VW1)}, {4*1024-1024}, {vr(VW0)}", w=[VW1], r=[VW0])
    e.valu(f"v_lshlrev_b32 {vr(VX)}, 4, {vr(lane)}", w=[VX], r=[lane])
    e.valu(f"v_lshlrev_b32 {vr(VFL)}, 2, {vr(lane)}", w=[VFL], r=[lane])
    e.valu(f"v_mov_b32 {vr(VZ)}, 0", w=[VZ])
    e.salu(f"s_lshl_b32 {sr(sWoff)}, {sr(sHG)}, 20")
    e.salu(f"s_lshl_b32 {sr(sT0)}, {sr(sNQ)}, 8")
    e.salu(f"s_add_u32 {sr(sWoff)}, {sr(sWoff)}, {sr(sT0)}")
    e.salu(f"s_mul_i32 {sr(sT0)}, {sr(sBBr)}, 9")
    e.salu(f"s_lshl_b32 {sr(sX+2)}, {sr(sW)}, 1")
    e.salu(f"s_add_u32 {sr(sX)}, {sr(sT0)}, {sr(sX+2)}")
    e.salu(f"s_add_u32 {sr(sX+1)}, {sr(sX)}, 1")
    e.salu(f"s_add_u32 {sr(sX+2)}, {sr(sT0)}, 8")
    e.salu(f"s_lshl_b32 {sr(sT0)}, {sr(sHG)}, 15")
    for t in range(3):
        e.salu(f"s_lshl_b32 {sr(sX+t)}, {sr(sX+t)}, 17")
        e.salu(f"s_add_u32 {sr(sX+t)}, {sr(sX+t)}, {sr(sT0)}")
    e.salu(f"s_lshr_b32 {sr(sU)}, {sr(sW)}, 1")
    e.salu(f"s_lshl_b32 {sr(sU)}, {sr(sU)}, 10")
    e.salu(f"s_add_u32 {sr(sX+2)}, {sr(sX+2)}, {sr(sU)}")
    for t in range(3):
        e.valu(f"v_add_u32 {vr(VXT[t])}, {sr(sX+t)}, {vr(VX)}", w=[VXT[t]], r=[VX])
    e.wait_all()
    e.barrier()
    e.valu(f"v_mov_b32 {vr(t5)}, {sr(sRT)}", w=[t5])
    e.salu(f"s_cmp_eq_u32 {sr(sW)}, 0")
    e.salu(f"s_cselect_b32 exec_lo, 1, 0")
    e.salu(f"s_mov_b32 exec_hi, 0")
    e.buf_store(t5, 1, VZ, SWS, sT1, flags=" sc1")
    set_exec_all(e)
    if opts.get("prio"): e.raw(f"s_setprio {opts.get('oprio', 0)}")
    stamp("pub1")
    def set_head(sreg):
        e.salu(f"s_lshl_b32 {sr(sWh)}, {sr(sreg)}, 17", sr_=[sreg])
        e.salu(f"s_add_u32 {sr(sWh)}, {sr(sWh)}, {sr(sWoff)}")
        e.salu(f"s_lshl_b32 {sr(sXh)}, {sr(sreg)}, 12")
    def issue_w(b):
        sl = b % NSL; tg = ("WO", b)
        out = []
        for h in range(2):
            base = (VREG_K if h == 0 else VREG_V) + sl * HS
            def c0(base=base, h=h):
                e.salu(f"s_add_u32 m0, {sr(sW2048)}, {base}", m0=True)
                e.dma(VW0, SWO, sWh, 0, tag=tg, lds=(base, base + 4096))
                e.dma(VW1, SWO, sWh, 1024, tag=tg, lds=(base + 4096, base + 8192))
                e.salu(f"s_add_u32 {sr(sWh)}, {sr(sWh)}, {32*1024}")
            out.append(c0)
        return out
    def issue_xs(b):
        sl = b % NSL; tg = ("WO", b)
        def c():
            e.salu(f"s_add_u32 m0, {sr(sU)}, {XSH2 + 2048*sl - 2048*(b & 1)}", m0=True)
            e.salu(f"s_mov_b64 exec, {sr(sEX, 2)}")
            e.dma(VXT[2], SXO, sXh, 2048 * (b & 1), flags=LF, tag=tg, lds=(XSH2 + 2048*sl, XSH2 + 2048*sl + 2048))
            e.salu("s_mov_b64 exec, -1")
        return [c]
    def xitems(b):
        return [lambda k=k, t=t: e.buf_load(XP(2*b + k, t), 4, VXT[t], SXO, sXh, 2048 * (b & 1) + 1024 * k, flags=LF) for k in range(2) for t in range(2)]
    def read_xs(ks):
        sl = (ks // 2) % NSL
        e.ds_read("ds_read_b128", XP(ks, 2), 4, VX, XSH2 + 2048*sl + 1024*(ks & 1), lds=(XSH2 + 2048*sl, XSH2 + 2048*sl + 2048))
    def choose(i):
        nm = f"CH{i}"
        e.salu(f"s_cmp_lg_u32 {sr(sW)}, 0")
        e.raw(f"s_cbranch_scc1 {nm}_done")
        st0 = e.snapshot()
        e.raw(f"s_mov_b32 {sr(sCnt)}, 0")
        e.label(f"{nm}_loop")
        e.raw(f"s_andn2_b32 {sr(sT0)}, {sr(sRdy)}, {sr(sDone)}")
        e.raw(f"s_cbranch_scc1 {nm}_ok")
        e.raw(f"s_mov_b64 exec, 0xff")
        e.raw(f"buffer_load_dword {vr(t5)}, {vr(VFL)}, {sr(SWS, 4)}, {sr(sF)} offen sc1")
        e.raw("s_waitcnt vmcnt(0)")
        e.raw(f"v_cmp_eq_u32 vcc, {sr(sRT)}, {vr(t5)}")
        e.raw(f"s_add_u32 {sr(sCnt)}, {sr(sCnt)}, 1")
        e.raw("s_mov_b64 exec, -1")
        e.raw("s_nop 1")
        e.raw(f"s_mov_b32 {sr(sRdy)}, vcc_lo")
        e.raw(f"s_andn2_b32 {sr(sT0)}, {sr(sRdy)}, {sr(sDone)}")
        e.raw(f"s_cbranch_scc1 {nm}_ok")
        if opts.get("esleep"): e.raw(f"s_sleep {opts['esleep']}")
        e.raw(f"s_cmp_lt_u32 {sr(sCnt)}, 0x200000")
        e.raw(f"s_cbranch_scc1 {nm}_loop")
        e.raw(f"s_andn2_b32 {sr(sT0)}, 0xff, {sr(sDone)}")
        e.label(f"{nm}_ok")
        e.raw(f"s_ff1_i32_b32 {sr(sT0)}, {sr(sT0)}")
        e.raw(f"s_bitset1_b32 {sr(sDone)}, {sr(sT0)}")
        e.raw(f"v_mov_b32 {vr(t5)}, {sr(sT0)}")
        e.raw(f"ds_write_b32 {vr(VZ)}, {vr(t5)} offset:{CH + 4*(i & 1)}")
        e.raw("s_waitcnt lgkmcnt(0)")
        e.label(f"{nm}_done")
        e.restore(st0); e.s.t += 1
    def get_choice(i):
        def a(): e.ds_read("ds_read_b32", VCH, 1, VZ, CH + 4 * (i & 1))
        def b():
            e.valu(f"v_readfirstlane_b32 {sr(sT1)}, {vr(VCH)}", r=[VCH], kind="readlane", sw=[sT1])
            set_head(sT1)
        return [a, b]
    set_head(sHL)
    for b in range(2):
        for c in issue_w(b) + issue_xs(b) + xitems(b): c()
    e.salu(f"s_mov_b32 {sr(sRdy)}, 0")
    e.salu(f"s_lshl_b32 {sr(sDone)}, 1, {sr(sHL)}")
    e.salu(f"s_lshl_b32 {sr(sT0)}, {sr(sKH)}, 2")
    e.salu(f"s_lshr_b32 {sr(sT0)}, 0xf0, {sr(sT0)}")
    e.salu(f"s_or_b32 {sr(sDone)}, {sr(sDone)}, {sr(sT0)}")
    for s_ in range(4):
        e.salu(f"s_add_u32 {sr(sS+s_)}, {sr(sW)}, {sr(sHG)}")
        e.salu(f"s_add_u32 {sr(sS+s_)}, {sr(sS+s_)}, {s_}")
        e.salu(f"s_and_b32 {sr(sS+s_)}, {sr(sS+s_)}, 3")
        e.salu(f"s_lshl_b32 {sr(sS+s_)}, {sr(sS+s_)}, 6")
    w_addr_setup(e, TT - 3, g, j, AWa, sS)
    e.valu(f"v_and_b32 {vr(t3)}, 1, {vr(g)}", w=[t3], r=[g])
    e.valu(f"v_lshlrev_b32 {vr(t3)}, 10, {vr(t3)}", w=[t3], r=[t3])
    e.salu(f"s_lshl_b32 {sr(sT0)}, {sr(sKH)}, 3")
    e.valu(f"v_or_b32 {vr(t3)}, {sr(sT0)}, {vr(t3)}", w=[t3], r=[t3])
    for i in range(8):
        e.valu(f"v_xor_b32 {vr(AWa[i])}, {vr(AWa[i])}, {vr(t3)}", w=[AWa[i]], r=[AWa[i], t3])
        e.valu(f"v_xor_b32 {vr(AWb[i])}, 0x400, {vr(AWa[i])}", w=[AWb[i]], r=[AWa[i]])
    st = Stream(e, FR)
    for ks in range(16):
        b = ks // 2
        base = (VREG_K if ks % 2 == 0 else VREG_V) + (b % NSL) * HS
        rg = (base, base + HS)
        for i in range(8):
            st.add([("ds_read_b64_tr_b16", 0, 2, AWa[i], base, rg), ("ds_read_b64_tr_b16", 2, 2, AWb[i], base, rg)])
    def after_bar(b):
        items = []
        if b + 2 < NB:
            if b % 2 == 0: items += get_choice(b // 2 + 1)
            items += issue_xs(b + 2) + issue_w(b + 2) + xitems(b + 2)
        return items
    for b in range(1, NB):
        F = 16 * b
        its = after_bar(b)
        st.bars[F] = (("WO", b), [lambda b=b: read_xs(2 * b)] + its[:1])
        for k, c in enumerate(its[1:]):
            st.atf.setdefault(F - st.BD + 2 + k, []).append(c)
        if b % 2 == 0 and b + 2 < NB:
            st.prebar[F] = lambda b=b: choose(b // 2 + 1)
    choose(1)
    e.wait_vm_tag(("WO", 0))
    e.barrier()
    stamp("poll1")
    read_xs(0)
    its0 = after_bar(0)
    its0[0]()
    st.start()
    for k, c in enumerate(its0[1:]):
        st.atf.setdefault(k, []).append(c)
    for ks in range(16):
        def uses(f, fr, ks=ks):
            i = f % 8
            first = ks == 0
            u = [lambda: e.mfma(AC[0] + 4*i, fr, XP(ks, 0), None if first else AC[0] + 4*i),
                 lambda: e.mfma(AC[1] + 4*i, fr, XP(ks, 1), None if first else AC[1] + 4*i)]
            if i < 2:
                u.append(lambda: e.mfma(AC[2] + 4*i, fr, XP(ks, 2), None if first else AC[2] + 4*i))
            return u
        mf, pinned = seg_from_stream(st, ks * 8, uses)
        spread = [(lambda ks=ks: read_xs(ks + 1), 1)] if ks % 2 == 0 else []
        emit_segment(e, mf, pinned, spread)
    stamp("ogemm")
    sPb, sPs, sXo, sS8, sE = sWoff, sWh, sXh, 42, 43
    e.salu(f"s_lshl_b32 {sr(sTile)}, {sr(sBr)}, 2")
    e.salu(f"s_add_u32 {sr(sTile)}, {sr(sTile)}, {sr(sB)}")
    e.salu(f"s_sub_u32 {sr(sTile)}, {sr(sTile)}, 4")
    e.salu(f"s_lshl_b32 {sr(sTile)}, {sr(sTile)}, 2")
    e.salu(f"s_add_u32 {sr(sTile)}, {sr(sTile)}, {sr(sNQ)}")
    e.salu(f"s_mul_i32 {sr(sPb)}, {sr(sTile)}, {64*9*1024}")
    e.salu(f"s_add_u32 {sr(sPb)}, {sr(sPb)}, {WS_P2}")
    e.salu(f"s_lshl_b32 {sr(sS8)}, {sr(sHG)}, 1")
    e.salu(f"s_add_u32 {sr(sS8)}, {sr(sS8)}, {sr(sKH)}")
    e.salu(f"s_mul_i32 {sr(sPs)}, {sr(sS8)}, {8*9*1024}")
    e.salu(f"s_add_u32 {sr(sPs)}, {sr(sPs)}, {sr(sPb)}")
    e.salu(f"s_mul_i32 {sr(sE)}, {sr(sKH)}, 9216")
    VP, VP2, vM, vTg, VOo, pv, acc, y = AWa[0], AWa[1], AWa[2], [AWa[3], AWa[4]], AWa[5], AWa[6], AWb[0], AWb[1]
    e.valu(f"v_add_u32 {vr(VP)}, {sr(sW2048)}, {vr(VX)}", w=[VP], r=[VX])
    e.valu(f"v_add_u32 {vr(VP2)}, 8192, {vr(VX)}", w=[VP2], r=[VX])
    e.valu(f"v_mov_b32 {vr(vM)}, 0xfffff000", w=[vM])
    e.salu(f"s_bfe_u32 {sr(sT0)}, {sr(sRT)}, 0xc0001")
    e.salu(f"s_bfe_u32 {sr(sT1)}, {sr(sRT)}, 0xc000d")
    e.valu(f"v_mov_b32 {vr(vTg[0])}, {sr(sT0)}", w=[vTg[0]])
    e.valu(f"v_mov_b32 {vr(vTg[1])}, {sr(sT1)}", w=[vTg[1]])
    def tagq(a, d=None):
        d = a if d is None else d
        for r in range(4):
            e.valu(f"v_and_or_b32 {vr(d+r)}, {vr(a+r)}, {vr(vM)}, {vr(vTg[r&1])}", w=[d+r], r=[a+r, vM, vTg[r&1]])
    for s_ in (1, 2, 3, 0):
        e.salu(f"s_mul_i32 {sr(sT1)}, {sr(sS+s_)}, {18*1024//64}")
        e.salu(f"s_add_u32 {sr(sT1)}, {sr(sT1)}, {sr(sPs)}")
        for ee in range(2):
            if ee == 0: e.salu(f"s_add_u32 {sr(sT0)}, {sr(sT1)}, {sr(sE)}")
            else:
                e.salu(f"s_sub_u32 {sr(sT0)}, {sr(sT1)}, {sr(sE)}")
                e.salu(f"s_add_u32 {sr(sT0)}, {sr(sT0)}, 9216")
            if not (s_ == 0 and ee == 0):
                for t in range(2):
                    a = AC[t] + 4 * (2*s_ + ee)
                    tagq(a)
                    e.buf_store(a, 4, VP, SWS, sT0, 1024 * t, flags=" sc1")
            if s_ == 0:
                tagq(AC[2] + 4*ee, FR + 4*ee)
                e.buf_store(FR + 4*ee, 4, VP2, SWS, sT0, 0, flags=" sc1")
    e.salu(f"s_mul_i32 {sr(sXo)}, {sr(sS)}, {18*1024//64}")
    e.salu(f"s_add_u32 {sr(sXo)}, {sr(sXo)}, {sr(sE)}")
    e.salu(f"s_add_u32 {sr(sXo)}, {sr(sXo)}, {sr(sPb)}")
    e.valu(f"v_and_b32 {vr(t3)}, 1, {vr(g)}", w=[t3], r=[g])
    e.valu(f"v_xor_b32 {vr(t3)}, {sr(sKH)}, {vr(t3)}", w=[t3], r=[t3])
    e.valu(f"v_lshlrev_b32 {vr(t3)}, 3, {vr(t3)}", w=[t3], r=[t3])
    e.valu(f"v_lshl_or_b32 {vr(t3)}, {vr(g)}, 4, {vr(t3)}", w=[t3], r=[g, t3])
    e.valu(f"v_lshl_or_b32 {vr(VOo)}, {vr(j)}, 11, {vr(t3)}", w=[VOo], r=[j, t3])
    sOo = sDone
    e.salu(f"s_mul_i32 {sr(sOo)}, {sr(sB)}, {144*2048}")
    e.salu(f"s_lshl_b32 {sr(sT0)}, {sr(sBr)}, 10")
    e.salu(f"s_add_u32 {sr(sOo)}, {sr(sOo)}, {sr(sT0)}")
    e.salu(f"s_lshl_b32 {sr(sT0)}, {sr(sNQ)}, 8")
    e.salu(f"s_add_u32 {sr(sOo)}, {sr(sOo)}, {sr(sT0)}")
    e.salu(f"s_add_u32 {sr(sOo)}, {sr(sOo)}, {sr(sS)}")
    e.valu(f"v_add_u32 {vr(pv)}, {sr(sS8)}, {vr(lane)}", w=[pv], r=[lane])
    e.valu(f"v_add_u32 {vr(pv)}, 1, {vr(pv)}", w=[pv], r=[pv])
    e.valu(f"v_and_b32 {vr(pv)}, 7, {vr(pv)}", w=[pv], r=[pv])
    e.valu(f"v_lshrrev_b32 {vr(pv+1)}, 1, {vr(pv)}", w=[pv+1], r=[pv])
    e.valu(f"v_add_u32 {vr(pv+1)}, {sr(sW)}, {vr(pv+1)}", w=[pv+1], r=[pv+1])
    e.valu(f"v_and_b32 {vr(pv+1)}, 3, {vr(pv+1)}", w=[pv+1], r=[pv+1])
    e.valu(f"v_and_b32 {vr(t3)}, 1, {vr(pv)}", w=[t3], r=[pv])
    e.valu(f"v_xor_b32 {vr(t3)}, 1, {vr(t3)}", w=[t3], r=[t3])
    e.valu(f"v_lshl_add_u32 {vr(pv)}, {vr(pv)}, 2, {vr(pv+1)}", w=[pv], r=[pv, pv+1])
    e.valu(f"v_lshl_add_u32 {vr(pv)}, {vr(pv)}, 1, {vr(t3)}", w=[pv], r=[pv, t3])
    e.valu(f"v_mul_u32_u24 {vr(pv)}, {9*1024}, {vr(pv)}", w=[pv], r=[pv])
    e.valu(f"v_add_u32 {vr(pv)}, {8*1024 + 1008}, {vr(pv)}", w=[pv], r=[pv])
    PBs = [XB + 12*k for k in range(6)] + [FR + 8]
    for d in range(7):
        for r in range(4):
            e.valu(f"v_mov_b32 {vr(PBs[d] + 8 + r)}, {vr(vTg[r&1])}", w=[PBs[d] + 8 + r], r=[vTg[r&1]])
    e.salu(f"s_mov_b32 {sr(sCnt)}, 0")
    e.salu("s_mov_b64 exec, 0x7f")
    e.label("Q2LOOP")
    e.raw(f"buffer_load_dword {vr(pv+1)}, {vr(pv)}, {sr(SWS, 4)}, {sr(sPb)} offen sc1")
    e.raw("s_waitcnt vmcnt(0)")
    e.raw(f"v_xor_b32 {vr(pv+1)}, {vr(pv+1)}, {vr(vTg[0])}")
    e.raw(f"v_and_b32 {vr(pv+1)}, 0xfff, {vr(pv+1)}")
    e.raw(f"v_cmp_ne_u32 vcc, 0, {vr(pv+1)}")
    e.raw(f"s_add_u32 {sr(sCnt)}, {sr(sCnt)}, 1")
    e.raw("s_nop 3")
    e.raw("s_cbranch_vccz Q2DONE")
    e.raw(f"s_sleep {opts.get('psleep', 4)}")
    e.raw(f"s_cmp_lt_u32 {sr(sCnt)}, 0x100000")
    e.raw("s_cbranch_scc1 Q2LOOP")
    e.label("Q2DONE")
    set_exec_all(e)
    e.wait_all(force=True)
    e.label("P2LOOP")
    for d in range(1, 8):
        e.salu(f"s_add_u32 {sr(sT0)}, {sr(sS8)}, {d}")
        e.salu(f"s_and_b32 {sr(sT0)}, {sr(sT0)}, 7")
        e.salu(f"s_mul_i32 {sr(sT0)}, {sr(sT0)}, {8*9*1024}")
        e.salu(f"s_add_u32 {sr(sT0)}, {sr(sT0)}, {sr(sXo)}")
        for q in range(2):
            e.buf_load(PBs[d-1] + 4*q, 4, VP, SWS, sT0, 1024 * q, flags=LF)
        e.salu(f"s_cmp_eq_u32 {sr(sW)}, 0")
        e.salu(f"s_cselect_b64 exec, -1, 0")
        e.buf_load(PBs[d-1] + 8, 4, VP2, SWS, sT0, 0, flags=LF)
        set_exec_all(e)
    k = 0
    for d in range(7):
        for q in range(6):
            a, b = PBs[d] + 2*q, PBs[d] + 2*q + 1
            e.valu(f"v_xor_b32 {vr(y)}, {vr(a)}, {vr(vTg[0])}", w=[y], r=[a, vTg[0]])
            e.valu(f"v_xor_b32 {vr(y+1)}, {vr(b)}, {vr(vTg[1])}", w=[y+1], r=[b, vTg[1]])
            if k == 0: e.valu(f"v_or_b32 {vr(acc)}, {vr(y)}, {vr(y+1)}", w=[acc], r=[y, y+1])
            else: e.valu(f"v_or3_b32 {vr(acc)}, {vr(acc)}, {vr(y)}, {vr(y+1)}", w=[acc], r=[acc, y, y+1])
            k += 1
    e.valu(f"v_and_b32 {vr(acc)}, 0xfff, {vr(acc)}", w=[acc], r=[acc])
    e.valu(f"v_cmp_ne_u32 vcc, 0, {vr(acc)}", r=[acc], sw=["vcc"])
    e.salu(f"s_add_u32 {sr(sCnt)}, {sr(sCnt)}, 1")
    e.nop(3)
    e.raw("s_cbranch_vccz P2DONE")
    e.salu(f"s_cmp_lt_u32 {sr(sCnt)}, 0x100000")
    e.raw("s_cbranch_scc1 P2LOOP")
    e.label("P2DONE")
    stamp("poll2")
    for t in range(3):
        A0 = AC[t]
        for d in range(7):
            for r in range(4):
                a = A0 + r; p_ = PBs[d] + 4*t + r
                e.valu(f"v_and_b32 {vr(p_)}, {vr(p_)}, {vr(vM)}", w=[p_], r=[p_, vM])
                e.valu(f"v_add_f32 {vr(a)}, {vr(a)}, {vr(p_)}", w=[a], r=[a, p_])
        for k in range(2):
            e.valu(f"v_cvt_pk_bf16_f32 {vr(A0+k)}, {vr(A0+2*k)}, {vr(A0+2*k+1)}", w=[A0+k], r=[A0+2*k, A0+2*k+1])
        if t < 2:
            e.salu(f"s_lshl_b32 {sr(sT0)}, {sr(sW)}, 16")
            e.salu(f"s_add_u32 {sr(sT0)}, {sr(sT0)}, {sr(sOo)}")
            if t: e.salu(f"s_add_u32 {sr(sT0)}, {sr(sT0)}, {16*2048}")
            e.buf_store(A0, 2, VOo, SOUT, sT0)
        else:
            e.salu(f"s_add_u32 {sr(sT0)}, {sr(sOo)}, {128*2048}")
            e.salu(f"s_cmp_eq_u32 {sr(sW)}, 0")
            e.salu(f"s_cselect_b64 exec, -1, 0")
            e.buf_store(A0, 2, VOo, SOUT, sT0)
            set_exec_all(e)

def gen_k1(opts):
    e = Em()
    SX, SK, SV, SWQ, SO = 4, 8, 12, 16, 20
    sW, sW2048, sKoff, sVoff, sWqoff = 24, 25, 26, 27, 28
    sX = 29
    sS = 32
    sB, sH, sBr, sT0, sT1, sMode, sItem, sOoff, sC = 58, 59, 60, 61, 62, 63, 64, 65, 66
    A = Alloc(0)
    O0 = A.get(32, 4); O1 = A.get(32, 4); O2 = A.get(32, 4)
    QF = [A.get(16, 4) for _ in range(3)]
    NM = [A.get(4, 4) for _ in range(3)]
    S = [[A.get(8, 4) for _ in range(2)] for _ in range(2)]
    S2 = A.get(8, 4)
    FR = A.get(32, 4)
    L = [[A.get(1), A.get(1)] for _ in range(3)]
    AW = [A.get(1) for _ in range(8)]
    AK = [A.get(1) for _ in range(4)]
    VK = A.get(1); VV = A.get(1)
    T = A.get(8)
    nv = A.n
    OA = [O0, O1, O2]
    VWQ0, VWQ1 = L[0][0], L[0][1]
    VXD0, VXD1, VXS = L[1][0], L[1][1], L[2][0]
    AXO = [NM[0], NM[0] + 1]; AXS = [NM[0] + 2, NM[0] + 3]
    XR = [[QF[0], QF[0] + 4, QF[0] + 8], [QF[1], QF[1] + 4, QF[1] + 8]]
    def XP(ks, t): return XR[ks & 1][t]
    sRot, sXk, sEX = 67, 3, 68
    sOUT, sDBG, sRT, sHG, sHL = 72, 74, 70, 76, 77
    FUSED = opts.get('fused', 0)
    XOWN = [VREG_V + 2 * HS, VREG_K + 2 * HS]
    XSH = VREG_V + 4 * HS

    e.salu("s_cmp_ge_u32 s2, 512")
    e.raw("s_cbranch_scc1 K1_END")
    if "onlybr" in opts:
        e.salu("s_bfe_u32 s3, s2, 0x10002")
        e.salu(f"s_cmp_lg_u32 s3, {opts['onlybr']}")
        e.raw("s_cbranch_scc1 K1_END")
    e.raw("s_load_dwordx16 s[36:51], s[0:1], 0")
    e.raw("s_load_dwordx4 s[52:55], s[0:1], 64")
    e.raw("s_load_dwordx2 s[56:57], s[0:1], 96")
    if FUSED:
        e.raw(f"s_load_dwordx4 {sr(sOUT, 4)}, s[0:1], 80")
        e.raw(f"s_memrealtime {sr(sRT, 2)}")
    stamp = Stamps(e, opts.get("stamp", 0))
    keep = {1: "w0 qproj attend epi pub1 poll1 ogemm poll2", 3: "poll1 oiss o0 og2 og4 og8 og12 ogemm",
            4: "attend e1 e2 e3 epi pub1 oiss poll1", 5: "ogemm pst pub2 poll2 pld", 6: "w0 qproj att0 att4 att8 att12 attend epi", 7: "att6 att8 att10 att12 att13 att14 att15 attend", 8: "qproj att0 att1 att2 att3 att4 att5 att6"}
    stamp.keep = keep.get(opts.get("stamp", 0), "").split() + ["start", "rstart", "end", "rend"]
    stamp("start"); stamp("rstart", True)
    lane, g, j = lane_setup(e, T, sW)
    e.salu(f"s_and_b32 {sr(sT0)}, s2, 7")
    e.salu(f"s_lshr_b32 {sr(sT1)}, s2, 3")
    e.salu(f"s_lshr_b32 {sr(sBr)}, {sr(sT0)}, 2")
    e.salu(f"s_and_b32 {sr(sHG)}, {sr(sT0)}, 3")
    if FUSED or opts.get("bmajor"):
        e.salu(f"s_and_b32 {sr(sHL)}, {sr(sT1)}, 7")
        e.salu(f"s_lshr_b32 {sr(sB)}, {sr(sT1)}, 3")
    else:
        e.salu(f"s_and_b32 {sr(sB)}, {sr(sT1)}, 7")
        e.salu(f"s_lshr_b32 {sr(sHL)}, {sr(sT1)}, 3")
    e.salu(f"s_lshl_b32 {sr(sH)}, {sr(sHG)}, 3")
    e.salu(f"s_add_u32 {sr(sH)}, {sr(sH)}, {sr(sHL)}")
    e.salu(f"s_lshl_b32 {sr(sW2048)}, {sr(sW)}, 11", sr_=[sW])
    for s in range(4):
        e.salu(f"s_add_u32 {sr(sS+s)}, {sr(sW)}, {s}")
        e.salu(f"s_and_b32 {sr(sS+s)}, {sr(sS+s)}, 3")
        e.salu(f"s_lshl_b32 {sr(sS+s)}, {sr(sS+s)}, 6")
    e.salu(f"s_lshl_b32 {sr(sItem)}, {sr(sB)}, 5")
    e.salu(f"s_add_u32 {sr(sItem)}, {sr(sItem)}, {sr(sH)}")
    e.salu(f"s_lshl_b32 {sr(sItem)}, {sr(sItem)}, 17")
    e.salu(f"s_lshl_b32 {sr(sWqoff)}, {sr(sH)}, 8")
    e.salu(f"s_mul_i32 {sr(sT0)}, {sr(sB)}, 144")
    e.salu(f"s_lshl_b32 {sr(sT1)}, {sr(sW)}, 5")
    e.salu(f"s_add_u32 {sr(sX)}, {sr(sT0)}, {sr(sT1)}")
    e.salu(f"s_add_u32 {sr(sX+1)}, {sr(sX)}, 16")
    e.salu(f"s_add_u32 {sr(sX+2)}, {sr(sT0)}, 128")
    for t in range(3):
        e.salu(f"s_lshl_b32 {sr(sX+t)}, {sr(sX+t)}, 10")
    e.salu(f"s_mov_b32 {sr(sMode)}, 0")
    e.salu(f"s_mov_b32 {sr(sC)}, {f32(CSCALE):#x}")
    rho = w_dma_chunk(e, T, g, j, sW, VV)
    e.valu(f"v_lshl_add_u32 {vr(VWQ0)}, {vr(rho)}, 13, {vr(VV)}", w=[VWQ0], r=[rho, VV])
    e.valu(f"v_add_u32 {vr(VWQ1)}, {4*8192-1024}, {vr(VWQ0)}", w=[VWQ1], r=[VWQ0])
    e.valu(f"v_lshl_add_u32 {vr(VV)}, {vr(rho)}, 8, {vr(VV)}", w=[VV], r=[rho, VV])
    t3 = T + 3
    e.valu(f"v_mov_b32 {vr(t3)}, {sr(sW)}", w=[t3], sr_=[sW])
    e.valu(f"v_lshl_or_b32 {vr(t3)}, {vr(t3)}, 2, {vr(g)}", w=[t3], r=[t3, g])
    e.valu(f"v_xor_b32 {vr(t3)}, {vr(t3)}, {vr(j)}", w=[t3], r=[t3, j])
    e.valu(f"v_lshlrev_b32 {vr(t3)}, 4, {vr(t3)}", w=[t3], r=[t3])
    e.valu(f"v_lshl_add_u32 {vr(VK)}, {vr(rho)}, 8, {vr(t3)}", w=[VK], r=[rho, t3])
    t4 = T + 4
    e.valu(f"v_and_b32 {vr(t3)}, 7, {vr(lane)}", w=[t3], r=[lane])
    e.valu(f"v_xor_b32 {vr(t3)}, {vr(t3)}, {vr(g)}", w=[t3], r=[t3, g])
    e.valu(f"v_lshlrev_b32 {vr(t3)}, 4, {vr(t3)}", w=[t3], r=[t3])
    e.valu(f"v_lshrrev_b32 {vr(t4)}, 3, {vr(lane)}", w=[t4], r=[lane])
    e.valu(f"v_lshl_add_u32 {vr(VXD0)}, {vr(t4)}, 10, {vr(t3)}", w=[VXD0], r=[t4, t3])
    e.valu(f"v_xor_b32 {vr(VXD1)}, 64, {vr(VXD0)}", w=[VXD1], r=[VXD0])
    e.valu(f"v_add_u32 {vr(VXD1)}, {8192-1024}, {vr(VXD1)}", w=[VXD1], r=[VXD1])
    e.salu(f"s_lshr_b32 {sr(sT0)}, {sr(sW)}, 1")
    e.salu(f"s_mul_i32 {sr(sT1)}, {sr(sT0)}, {8192+64}")
    e.valu(f"v_xor_b32 {vr(VXS)}, {sr(sT1)}, {vr(VXD0)}", w=[VXS], r=[VXD0])
    e.salu(f"s_and_b32 {sr(sT1)}, {sr(sW)}, 1")
    e.salu(f"s_sub_u32 {sr(sEX+1)}, 0, {sr(sT1)}")
    e.salu(f"s_not_b32 {sr(sEX)}, {sr(sEX+1)}")
    e.salu(f"s_add_u32 {sr(sRot)}, {sr(sH)}, {sr(sB)}")
    if opts.get("rot2", 1):
        e.salu(f"s_add_u32 {sr(sRot)}, {sr(sRot)}, {sr(sB)}")
        e.salu(f"s_lshr_b32 {sr(sT0)}, {sr(sB)}, 2")
        e.salu(f"s_add_u32 {sr(sRot)}, {sr(sRot)}, {sr(sT0)}")
    e.salu(f"s_and_b32 {sr(sRot)}, {sr(sRot)}, {7 if opts.get('rot', 1) else 0}")
    e.raw("s_waitcnt lgkmcnt(0)")
    if opts.get("stamp") == 2: stamp("karg")
    e.salu(f"s_cmp_eq_u32 {sr(sBr)}, 1")
    srd_sel(e, SWQ, 42, 52, 512 * 4096 * 2)
    srd_sel(e, SX, 36, 46, 8 * 144 * 512 * 2)
    srd_sel(e, SK, 38, 48, 8 * 32 * 512 * 128 * 2)
    srd_sel(e, SV, 40, 50, 8 * 32 * 512 * 128 * 2)
    L2F = opts.get("l2f", 0)
    sXV, sFast = 36, 37
    if L2F:
        srd(e, SO, sDBG, sDBG + 1, 256)
        e.salu(f"s_or_b32 {sr(sRT)}, {sr(sRT)}, 1")
        e.valu(f"v_mov_b32 {vr(S2)}, {sr(sRT)}", w=[S2])
        e.valu(f"v_mov_b32 {vr(S2+1)}, 0", w=[S2+1])
        e.salu(f"s_or_b32 {sr(sT0)}, s2, {sr(sW)}")
        e.salu(f"s_cmp_eq_u32 {sr(sT0)}, 0")
        e.salu(f"s_cselect_b32 exec_lo, 1, 0")
        e.salu(f"s_mov_b32 exec_hi, 0")
        e.buf_store(S2, 1, S2 + 1, SO, "0", flags=" sc1")
        set_exec_all(e)
    srd(e, SO, 56, 57, 2 * 1152 * 4096 * 2)

    KVF = " nt" if opts.get("nt", 1) else ""
    WF0 = " nt" if opts.get("wnt", 0) else ""
    KF = " nt" if opts.get("knt", opts.get("nt", 1)) else ""
    XF0 = " nt" if opts.get("xnt", 0) else ""
    def issue_w(b):
        sl = b % 2
        out = []
        tg = ("W", b)
        WF = " nt" if b < opts.get("wntf", 0) else WF0
        XF = " nt" if b < opts.get("xntf", 0) else XF0
        for h in range(2):
            base = (VREG_K if h == 0 else VREG_V) + sl * HS
            def c0(base=base, h=h):
                if h == 0:
                    e.salu(f"s_add_u32 {sr(sXk)}, {sr(sRot)}, {b}")
                    e.salu(f"s_and_b32 {sr(sXk)}, {sr(sXk)}, 7")
                    e.salu(f"s_lshl_b32 {sr(sWqoff)}, {sr(sXk)}, 19")
                    e.salu(f"s_lshl_b32 {sr(sXk)}, {sr(sXk)}, 7")
                    e.salu(f"s_lshl_b32 {sr(sT0)}, {sr(sH)}, 8")
                    e.salu(f"s_add_u32 {sr(sWqoff)}, {sr(sWqoff)}, {sr(sT0)}")
                e.salu(f"s_add_u32 m0, {sr(sW2048)}, {base}", m0=True)
                e.dma(VWQ0, SWQ, sWqoff, 0, flags=WF, tag=tg, lds=(base, base + 4096))
                e.dma(VWQ1, SWQ, sWqoff, 1024, flags=WF, tag=tg, lds=(base + 4096, base + 8192))
                if h == 0:
                    e.salu(f"s_add_u32 {sr(sWqoff)}, {sr(sWqoff)}, {32*8192}")
            out.append(c0)
        for t in range(2):
            def cx(t=t):
                e.salu(f"s_lshl_b32 {sr(sT0)}, {sr(sW2048)}, 1")
                e.salu(f"s_add_u32 {sr(sT1)}, {sr(sX+t)}, {sr(sXk)}")
                e.salu(f"s_add_u32 m0, {sr(sT0)}, {XOWN[sl] + 2048*t}", m0=True)
                e.dma(VXD0, SX, sT1, 0, flags=XF, tag=tg, lds=(XOWN[sl] + 8192*t, XOWN[sl] + 8192*t + 4096))
                e.dma(VXD1, SX, sT1, 1024, flags=XF, tag=tg, lds=(XOWN[sl] + 8192*t + 4096, XOWN[sl] + 8192*t + 8192))
            out.append(cx)
        def cs():
            e.salu(f"s_lshr_b32 {sr(sT0)}, {sr(sW)}, 1")
            e.salu(f"s_lshl_b32 {sr(sT0)}, {sr(sT0)}, 10")
            e.salu(f"s_add_u32 {sr(sT1)}, {sr(sX+2)}, {sr(sXk)}")
            e.salu(f"s_add_u32 m0, {sr(sT0)}, {XSH + 2048*sl}", m0=True)
            e.salu(f"s_mov_b64 exec, {sr(sEX, 2)}")
            e.dma(VXS, SX, sT1, 0, flags=XF, tag=tg, lds=(XSH + 2048*sl, XSH + 2048*sl + 2048))
            e.salu("s_mov_b64 exec, -1")
        out.append(cs)
        return out
    def issue_kv(n):
        sl = KVSLOT[n % 5]
        out = []
        if n <= 15:
            def k0():
                e.salu(f"s_add_u32 m0, {sr(sW2048)}, {VREG_K + sl*HS}", m0=True)
                e.dma(VK, SK, sKoff, 0, flags=KF, tag=("KV", n), lds=(VREG_K + sl*HS, VREG_K + sl*HS + 4096))
            def k1():
                e.dma(VK, SK, sKoff, 1024, flags=KF, tag=("KV", n), lds=(VREG_K + sl*HS + 4096, VREG_K + sl*HS + 8192))
                if opts.get("m0opt") and 1 <= n <= 16:
                    e.salu(f"s_add_u32 m0, {sr(sW2048)}, {VREG_V + sl*HS}", m0=True)
                e.salu(f"s_add_u32 {sr(sKoff)}, {sr(sKoff)}, {HS}")
            out += [k0, k1]
        if 1 <= n <= 16:
            def v0():
                if not (opts.get("m0opt") and n <= 15):
                    e.salu(f"s_add_u32 m0, {sr(sW2048)}, {VREG_V + sl*HS}", m0=True)
                e.dma(VV, SV, sVoff, 0, flags=KVF, tag=("KV", n), lds=(VREG_V + sl*HS, VREG_V + sl*HS + 4096))
            def v1():
                e.dma(VV, SV, sVoff, 1024, flags=KVF, tag=("KV", n), lds=(VREG_V + sl*HS + 4096, VREG_V + sl*HS + 8192))
                e.salu(f"s_add_u32 {sr(sVoff)}, {sr(sVoff)}, {HS}")
            out += [v0, v1]
        return out
    NST = opts.get("nst", 0)
    STG = [O2 + 8 + 4*k for k in range(6)] + [NM[1], NM[2]] + [S[a][b] + 4*k for a in range(2) for b in range(2) for k in range(2)]
    STA, STAK = T + 7, L[2][1]
    def stage_load(n):
        for q, (vo, srd_, so) in enumerate(((VK, SK, sKoff), (VV, SV, sVoff))):
            for u in range(2):
                e.buf_load(STG[(n - 1) * 4 + 2*q + u], 4, vo, srd_, so, 1024 * u, flags=KVF)
            e.salu(f"s_add_u32 {sr(so)}, {sr(so)}, {HS}")
    def stage_write(n):
        sl = KVSLOT[n % 5]
        out = []
        for q, reg in enumerate((VREG_K, VREG_V)):
            for u in range(2):
                d = STG[(n - 1) * 4 + 2*q + u]
                out.append(lambda d=d, reg=reg, u=u: e.ds_write("ds_write_b128", STA if reg == VREG_V else STAK, d, 4, sl*HS + 1024*u,
                           lds=(reg + sl*HS + 4096*u, reg + sl*HS + 4096*u + 4096)))
        return out
    QST = opts.get("qst", 0)
    QS = STG + [QF[2] + 4*k for k in range(4)]
    AXW, AXX, AXS_ = T + 7, L[2][1], QF[0] + 12
    def q_load(b):
        R_ = QS[9 * (b & 1): 9 * (b & 1) + 9]
        def c0():
            e.salu(f"s_add_u32 {sr(sXk)}, {sr(sRot)}, {b}")
            e.salu(f"s_and_b32 {sr(sXk)}, {sr(sXk)}, 7")
            e.salu(f"s_lshl_b32 {sr(sWqoff)}, {sr(sXk)}, 19")
            e.salu(f"s_lshl_b32 {sr(sXk)}, {sr(sXk)}, 7")
            e.salu(f"s_lshl_b32 {sr(sT0)}, {sr(sH)}, 8")
            e.salu(f"s_add_u32 {sr(sWqoff)}, {sr(sWqoff)}, {sr(sT0)}")
            e.buf_load(R_[0], 4, VWQ0, SWQ, sWqoff, 0)
            e.buf_load(R_[1], 4, VWQ1, SWQ, sWqoff, 1024)
            e.salu(f"s_add_u32 {sr(sWqoff)}, {sr(sWqoff)}, {32*8192}")
        def c1():
            e.buf_load(R_[2], 4, VWQ0, SWQ, sWqoff, 0)
            e.buf_load(R_[3], 4, VWQ1, SWQ, sWqoff, 1024)
        def cx(t):
            e.salu(f"s_add_u32 {sr(sT1)}, {sr(sX+t)}, {sr(sXk)}")
            e.buf_load(R_[4 + 2*t], 4, VXD0, SX, sT1, 0)
            e.buf_load(R_[5 + 2*t], 4, VXD1, SX, sT1, 1024)
        def cs():
            e.salu(f"s_add_u32 {sr(sT1)}, {sr(sX+2)}, {sr(sXk)}")
            e.salu(f"s_mov_b64 exec, {sr(sEX, 2)}")
            e.buf_load(R_[8], 4, VXS, SX, sT1, 0)
            e.salu("s_mov_b64 exec, -1")
        return [c0, c1, lambda: cx(0), lambda: cx(1), cs]
    def q_write(b):
        R_ = QS[9 * (b & 1): 9 * (b & 1) + 9]
        sl = b % 2
        out = []
        for h in range(2):
            base = (VREG_K if h == 0 else VREG_V) + sl * HS
            for u in range(2):
                out.append(lambda h=h, u=u, base=base: e.ds_write("ds_write_b128", AXW, R_[2*h + u], 4, base + 1024*u, lds=(base + 4096*u, base + 4096*u + 4096)))
        for t in range(2):
            for u in range(2):
                out.append(lambda t=t, u=u: e.ds_write("ds_write_b128", AXX, R_[4 + 2*t + u], 4, XOWN[sl] + 2048*t + 1024*u,
                                                       lds=(XOWN[sl] + 8192*t + 4096*u, XOWN[sl] + 8192*t + 4096*u + 4096)))
        def cs():
            e.salu(f"s_mov_b64 exec, {sr(sEX, 2)}")
            e.ds_write("ds_write_b128", AXS_, R_[8], 4, XSH + 2048*sl, lds=(XSH + 2048*sl, XSH + 2048*sl + 2048))
            e.salu("s_mov_b64 exec, -1")
        out.append(cs)
        return out
    def do_warm(SRD, va, vd):
        e.salu(f"s_cmp_eq_u32 {sr(sBr)}, 1")
        srd_sel(e, SRD, 44, 54, 4096 * 512 * 2)
        e.salu(f"s_lshl_b32 {sr(sT0)}, {sr(sHG)}, 20")
        e.salu(f"s_lshl_b32 {sr(sT1)}, {sr(sHL)}, 7")
        e.salu(f"s_add_u32 {sr(sT0)}, {sr(sT0)}, {sr(sT1)}")
        e.salu(f"s_lshl_b32 {sr(sT1)}, {sr(sB)}, 17")
        e.salu(f"s_add_u32 {sr(sT0)}, {sr(sT0)}, {sr(sT1)}")
        e.salu(f"s_lshl_b32 {sr(sT1)}, {sr(sW)}, 15")
        e.salu(f"s_add_u32 {sr(sT0)}, {sr(sT0)}, {sr(sT1)}")
        e.valu(f"v_lshrrev_b32 {vr(va)}, 3, {vr(lane)}", w=[va], r=[lane])
        e.valu(f"v_lshlrev_b32 {vr(va)}, 10, {vr(va)}", w=[va], r=[va])
        e.valu(f"v_and_b32 {vr(vd)}, 7, {vr(lane)}", w=[vd], r=[lane])
        e.valu(f"v_lshl_add_u32 {vr(va)}, {vr(vd)}, 4, {vr(va)}", w=[va], r=[va, vd])
        for k in range(4):
            e.raw(f"buffer_load_dwordx4 {vr(vd, 4)}, {vr(va)}, {sr(SRD, 4)}, {sr(sT0)} offen{' nt' if opts.get('warmnt') else ''}")
            e.s.vm.append((None, frozenset(R(vd, 4))))
            e.salu(f"s_add_u32 {sr(sT0)}, {sr(sT0)}, 8192")
    def read_x(ks, t):
        sl = (ks // 2) % 2
        if t < 2: e.ds_read("ds_read_b128", XP(ks, t), 4, AXO[ks & 1], XOWN[sl] + 2048 * t, lds=(XOWN[sl], XOWN[sl] + 16384))
        else: e.ds_read("ds_read_b128", XP(ks, t), 4, AXS[ks & 1], XSH + 2048 * sl, lds=(XSH + 2048*sl, XSH + 2048*sl + 2048))
    if opts.get("exp_now"):
        issue_w = lambda b: []
    EXP = str(opts.get("exp", "")).split(",")
    if opts.get("exp_nokv"):
        issue_kv = lambda n: []
        e.salu(f"s_mov_b32 {sr(sMode)}, 1")
    e.salu(f"s_mov_b32 {sr(sKoff)}, {sr(sItem)}")
    e.salu(f"s_mov_b32 {sr(sVoff)}, {sr(sItem)}")
    if opts.get("stamp") == 2:
        for k, c in enumerate(issue_w(0) + issue_w(1)):
            c()
            if k in (0, 1, 2, 4, 6): stamp(f"iss{k}")
    else:
        def early():
            for c in issue_kv(0): c()
            for n_ in range(1, NST + 1): stage_load(n_)
        if NST and opts.get("stpos", 0) == 0: early()
        for c in issue_w(0): c()
        if NST and opts.get("stpos", 0) == 1: early()
        for c in issue_w(1): c()
        if NST and opts.get("stpos", 0) == 2: early()
        if opts.get("warmstep") == -1:
            do_warm(SO, S2, S2 + 4)
            srd(e, SO, 56, 57, 2 * 1152 * 4096 * 2)
    if QST:
        assert NST == 0
        for c in q_load(2) + q_load(3): c()
        e.valu(f"v_lshlrev_b32 {vr(AXS_)}, 4, {vr(lane)}", w=[AXS_], r=[lane])
        e.valu(f"v_add_u32 {vr(AXW)}, {sr(sW2048)}, {vr(AXS_)}", w=[AXW], r=[AXS_])
        e.valu(f"v_add_u32 {vr(AXX)}, {sr(sW2048)}, {vr(AXW)}", w=[AXX], r=[AXW])
        e.salu(f"s_lshr_b32 {sr(sT0)}, {sr(sW)}, 1")
        e.salu(f"s_lshl_b32 {sr(sT0)}, {sr(sT0)}, 10")
        e.valu(f"v_add_u32 {vr(AXS_)}, {sr(sT0)}, {vr(AXS_)}", w=[AXS_], r=[AXS_])
    if NST:
        e.valu(f"v_lshlrev_b32 {vr(STA)}, 4, {vr(lane)}", w=[STA], r=[lane])
        e.valu(f"v_add_u32 {vr(STA)}, {sr(sW2048)}, {vr(STA)}", w=[STA], r=[STA])
        e.valu(f"v_add_u32 {vr(STAK)}, {VREG_K}, {vr(STA)}", w=[STAK], r=[STA])
    e.valu(f"v_lshrrev_b32 {vr(t3)}, 1, {vr(j)}", w=[t3], r=[j])
    e.valu(f"v_xor_b32 {vr(t3)}, {vr(t3)}, {vr(g)}", w=[t3], r=[t3, g])
    e.valu(f"v_lshlrev_b32 {vr(t3)}, 4, {vr(t3)}", w=[t3], r=[t3])
    e.valu(f"v_lshl_add_u32 {vr(AXS[0])}, {vr(j)}, 7, {vr(t3)}", w=[AXS[0]], r=[j, t3])
    e.valu(f"v_xor_b32 {vr(AXS[1])}, 64, {vr(AXS[0])}", w=[AXS[1]], r=[AXS[0]])
    e.salu(f"s_lshl_b32 {sr(sT0)}, {sr(sW)}, 12")
    for k in range(2):
        e.valu(f"v_add_u32 {vr(AXO[k])}, {sr(sT0)}, {vr(AXS[k])}", w=[AXO[k]], r=[AXS[k]])
    w_addr_setup(e, T, g, j, AW, sS)
    t3, t4 = T + 3, T + 4
    e.valu(f"v_lshrrev_b32 {vr(t3)}, 2, {vr(j)}", w=[t3], r=[j])
    e.valu(f"v_and_b32 {vr(t4)}, 3, {vr(j)}", w=[t4], r=[j])
    e.valu(f"v_lshl_add_u32 {vr(t3)}, {vr(t3)}, 3, {vr(t4)}", w=[t3], r=[t3, t4])
    e.valu(f"v_xor_b32 {vr(t4)}, {vr(g)}, {vr(j)}", w=[t4], r=[g, j])
    e.valu(f"v_lshlrev_b32 {vr(t4)}, 4, {vr(t4)}", w=[t4], r=[t4])
    e.valu(f"v_lshl_add_u32 {vr(t3)}, {vr(t3)}, 8, {vr(t4)}", w=[t3], r=[t3, t4])
    for s in range(4):
        e.valu(f"v_xor_b32 {vr(AK[s])}, {sr(sS+s)}, {vr(t3)}", w=[AK[s]], r=[t3])
        e.valu(f"v_add_u32 {vr(AK[s])}, {VREG_K}, {vr(AK[s])}", w=[AK[s]], r=[AK[s]])

    st = Stream(e, FR)
    def post_w(b):
        out = [lambda: [read_x(2 * b, t) for t in range(3)]]
        if QST:
            items = (q_write(b + 1) if b + 1 <= 7 else [])
            if b == 6: items += issue_kv(0)
            if b == 7: items += issue_kv(1)
            later = q_load(b + 3) if b + 3 <= 7 else []
            if b == 7: return out + items
            return (out, items + [lambda: e.wait_all(vm=False)] * (1 if later else 0) + later, 1)
        if b + 1 <= 7: out += issue_w(b + 1)
        if NST == 0:
            if b == 6: out += issue_kv(0)
            if b == 7: out += issue_kv(1)
        elif b == 7: out += stage_write(1)
        if opts.get("qsp", 0) and b < 7: return (out[:1], out[1:], opts["qsp"])
        return out
    def qspread(ks):
        if ks % 2 == 0:
            return [(lambda t=t: read_x(ks + 1, t), 1) for t in range(3)]
        return []
    stamp("issued")
    if opts.get("qprio"): e.raw(f"s_setprio {opts['qprio']}")
    gemm_phase(e, st, 16, AW, O0, O1, O2, XP, lambda b: b % 2, post_w, qspread,
               after_first=lambda: [read_x(0, t) for t in range(3)], stamp=stamp)
    stamp("qproj")
    def pack_scaled(dst, a, scale_txt, scale_r=(), scale_s=()):
        for half in range(2):
            for r in range(4):
                x = a + 4*half + r
                e.valu(f"v_mul_f32 {vr(x)}, {scale_txt}, {vr(x)}", w=[x], r=[x] + list(scale_r), sr_=scale_s)
        for k in range(4):
            e.valu(f"v_cvt_pk_bf16_f32 {vr(dst+k)}, {vr(a+2*k)}, {vr(a+2*k+1)}", w=[dst+k], r=[a+2*k, a+2*k+1])
    QX = S2
    XA = XSH + 4096
    def swap4(lst):
        set_exec_odd(e)
        for b4 in lst:
            e.valu(f"v_swap_b32 {vr(b4)}, {vr(b4+2)}", w=[b4, b4+2], r=[b4, b4+2])
            e.valu(f"v_swap_b32 {vr(b4+1)}, {vr(b4+3)}", w=[b4+1, b4+3], r=[b4+1, b4+3])
        set_exec_all(e)
    EARLYB = opts.get("earlyb", 1) and NST == 0
    pack_scaled(QX, O2, sr(sC))
    swap4([QX])
    e.valu(f"v_lshlrev_b32 {vr(t3)}, 4, {vr(lane)}", w=[t3], r=[lane])
    e.salu(f"s_lshl_b32 {sr(sT0)}, {sr(sW)}, 10")
    e.valu(f"v_add_u32 {vr(t4)}, {sr(sT0)}, {vr(t3)}", w=[t4], r=[t3])
    e.ds_write("ds_write_b128", t4, QX, 4, XA, lds=(XA, XA + 4096))
    def own_tiles():
        for t in range(2):
            for s in range(4):
                pack_scaled(QF[t] + 4*s, OA[t] + 8*s, sr(sC))
        swap4([QF[t] + 4*s for t in range(2) for s in range(4)])
    if EARLYB:
        e.wait_all(vm=False)
        e.barrier()
        for n_ in range(2, opts.get("kvd0", opts.get("kvd", 4)) + 1):
            for c in issue_kv(n_): c()
        own_tiles()
        e.wait_vm_tag(("KV", 0))
        e.barrier()
    else:
        own_tiles()
        e.wait_vm_tag(("KV", 0), also_lgkm0=True)
        e.barrier()
    for s in range(4):
        e.salu(f"s_lshl_b32 {sr(sT0)}, {sr(sS+s)}, 4")
        e.valu(f"v_add_u32 {vr(t4)}, {sr(sT0)}, {vr(t3)}", w=[t4], r=[t3])
        e.ds_read("ds_read_b128", QF[2] + 4*s, 4, t4, XA, lds=(XA, XA + 4096))
    if opts.get("dumpq"):
        pass
    for n_ in range(2, NST + 1):
        for c in stage_write(n_): c()
    e.label("ATT_ENTRY")
    if opts.get("prio"): e.raw(f"s_setprio {opts['prio']}")
    entry_state = e.snapshot()
    KD = opts.get("kvd", 4)
    FIRSTD = max(2, NST + 1)
    if EARLYB: FIRSTD = opts.get("kvd0", KD) + 1
    KD0 = opts.get("kvd0", KD)
    for n_ in range(FIRSTD, KD0 + 1):
        for c in issue_kv(n_): c()
    nxt = max(FIRSTD, KD0 + 1)
    st = Stream(e, FR)
    for n in range(17):
        sl = KVSLOT[n % 5]
        first = len(st.frags)
        if n <= 15:
            for t in range(2):
                for s in range(4):
                    st.add(kfrag_reads(AK, t, s, sl * HS))
        if n >= 1:
            for i in range(8):
                st.add(wfrag_reads(AW, i, VREG_V + sl * HS))
        if n >= 1 and opts.get("bar2"):
            if n % 2 == 1:
                post = []
                while nxt <= min(16, n + opts["bar2"]):
                    post += issue_kv(nxt); nxt += 1
                if len(post) > 0 and n <= 13:
                    st.place(first, post, 1, opts.get("dsp2", 1)); post = []
                st.bars[first] = (("KV", n + 1), post)
        elif n >= 1:
            kd = KD if n < opts.get("kswitch", 99) else opts["kvd2"]
            post = []
            while nxt <= min(16, n + kd) and len(post) < 8:
                post += issue_kv(nxt); nxt += 1
            if opts.get("late", 0):
                assert kd <= 3
                st.prebar[first] = lambda pre=post: [c() for c in pre]
                post = []
            if opts.get("dsp", 0) and len(post) <= 4 and n <= 15:
                st.place(first, post, 1, opts["dsp"]); post = []
            st.bars[first] = (("KV", n), post)
    st.start()
    for t in range(3):
        for k in range(2):
            e.valu(f"v_mov_b32 {vr(L[t][k])}, 0", w=[L[t][k]])
    def kseg(n): return 0 if n == 0 else 16 * n - 8
    def vseg(n): return 16 * n + 16 if n < 15 else 16 * 16 - 8
    assert vseg(15) == len(st.frags) - 8 and vseg(0) == 16 and kseg(1) == 8

    def sm_part(Sb, Lr, part):
        out = []
        b = Sb + 4 * part
        for r in range(4):
            out.append((lambda r=r: e.trans(f"v_exp_f32 {vr(b+r)}, {vr(b+r)}", w=[b+r], r=[b+r]), 2))
        seq = [out[0], out[1]]
        def add(r):
            return (lambda: e.valu(f"v_add_f32 {vr(Lr[r&1])}, {vr(Lr[r&1])}, {vr(b+r)}", w=[Lr[r&1]], r=[Lr[r&1], b+r]), 1)
        def cvt(k):
            d = Sb + 2 * part + k
            return (lambda: e.valu(f"v_cvt_pk_bf16_f32 {vr(d)}, {vr(b+2*k)}, {vr(b+2*k+1)}", w=[d], r=[b+2*k, b+2*k+1]), 1)
        seq += [add(0), out[2], add(1), out[3], cvt(0), add(2), add(3), cvt(1)]
        if "noadd" in EXP: seq = out + [cvt(0), cvt(1)]
        if "novalu" in EXP: seq = []
        if part == 0:
            pass
        return seq
    def first_max(Sb, t):
        m, tt = T + 5, T + 6
        e.valu(f"v_max3_f32 {vr(m)}, {vr(Sb)}, {vr(Sb+1)}, {vr(Sb+2)}", w=[m], r=[Sb, Sb+1, Sb+2])
        e.valu(f"v_max3_f32 {vr(m)}, {vr(m)}, {vr(Sb+3)}, {vr(Sb+4)}", w=[m], r=[m, Sb+3, Sb+4])
        e.valu(f"v_max3_f32 {vr(m)}, {vr(m)}, {vr(Sb+5)}, {vr(Sb+6)}", w=[m], r=[m, Sb+5, Sb+6])
        e.valu(f"v_max_f32 {vr(m)}, {vr(m)}, {vr(Sb+7)}", w=[m], r=[m, Sb+7])
        xlane_reduce(e, "v_max_f32", m, tt)
        lab = e.newlabel("SKIPM")
        e.salu(f"s_cmp_eq_u32 {sr(sMode)}, 1")
        e.raw(f"s_cbranch_scc1 {lab}")
        s0 = e.snapshot()
        for k in range(4):
            e.valu(f"v_sub_f32 {vr(NM[t]+k)}, 0, {vr(m)}", w=[NM[t]+k], r=[m])
        s1 = e.snapshot()
        e.label(lab)
        e.merge(s0, s1)
        for r in range(8):
            e.valu(f"v_add_f32 {vr(Sb+r)}, {vr(Sb+r)}, {vr(NM[t])}", w=[Sb+r], r=[Sb+r, NM[t]])

    def qk_seg(n, with2, spread):
        p = n & 1
        def uses(f, fr):
            k = f - kseg(n); t = k // 4; s = k % 4
            u = []
            for q in range(2):
                d = S[p][q] + 4*t
                c = (None if n == 0 else NM[q]) if s == 0 else d
                u.append(lambda d=d, c=c, q=q: e.mfma(d, fr, QF[q] + 4*s, c))
            if with2:
                d = S2 + 4*t
                c = (None if n < 4 else NM[2]) if s == 0 else d
                u.append(lambda d=d, c=c: e.mfma(d, fr, QF[2] + 4*s, c))
            return u
        mf, pinned = seg_from_stream(st, kseg(n), uses)
        emit_segment(e, mf, pinned, spread)
    def pv_seg(n, with2, spread):
        p = n & 1
        def uses(f, fr):
            i = f - vseg(n)
            u = []
            for q in range(2):
                d = OA[q] + 4*i
                u.append(lambda d=d, q=q: e.mfma(d, fr, S[p][q], None if n == 0 else d))
            if with2:
                d = O2 + 4*i
                u.append(lambda d=d: e.mfma(d, fr, S2, None if n < 4 else d))
            return u
        mf, pinned = seg_from_stream(st, vseg(n), uses)
        emit_segment(e, mf, pinned, spread)
    def sm2_block(n):
        if n < 4:
            first_max(S2, 2)
        for part in range(2):
            for c, _ in sm_part(S2, L[2], part): c()
    def interleave2(a, b):
        out = []
        for x, y in zip(a, b): out += [x, y]
        return out
    isw = lambda n: f"s_cmp_eq_u32 {sr(sW)}, {(n & 3) if 'not2' not in EXP else 77}"
    if "nobar" in EXP:
        _bar = e.barrier
        def nb(): e.s.epoch += 1
        e.barrier = nb
    e.variant(isw(0), lambda: qk_seg(0, True, []), lambda: qk_seg(0, False, []))
    for q in range(2): first_max(S[0][q], q)
    for n in range(16):
        p = n & 1
        sp0 = lambda: interleave2(sm_part(S[p][0], L[0], 0), sm_part(S[p][1], L[1], 0))
        sp1 = lambda: interleave2(sm_part(S[p][0], L[0], 1), sm_part(S[p][1], L[1], 1))
        if n >= 1:
            e.variant(isw(n - 1), lambda: pv_seg(n - 1, True, sp0()), lambda: pv_seg(n - 1, False, sp0()))
        else:
            for c, _ in sp0(): c()
        stamp(f"att{n}")
        if FUSED and n == opts.get("warmstep", 5) and opts.get("warm", 1): do_warm(SX, T + 3, T + 4)
        if opts.get("dummy") and n in (4, 6):
            srd(e, SWQ, 56, 57, 0x10000000)
            e.salu(f"s_lshl_b32 {sr(sT0)}, s2, 2")
            e.salu(f"s_add_u32 {sr(sT0)}, {sr(sT0)}, {sr(sW)}")
            e.salu(f"s_mul_i32 {sr(sT0)}, {sr(sT0)}, {opts['dummy'] * 2048}")
            e.salu(f"s_add_u32 {sr(sT0)}, {sr(sT0)}, {(136 << 20) + (n == 6) * opts['dummy'] * 1024}")
            e.valu(f"v_lshlrev_b32 {vr(T+3)}, 4, {vr(lane)}", w=[T+3], r=[lane])
            for k in range(opts["dummy"]):
                e.raw(f"buffer_load_dwordx4 {vr(T+4, 4)}, {vr(T+3)}, {sr(SWQ, 4)}, {sr(sT0)} offen{' nt' if opts.get('dummynt', 1) else ''}")
                e.s.vm.append((None, frozenset(R(T + 4, 4))))
                e.salu(f"s_add_u32 {sr(sT0)}, {sr(sT0)}, 1024")
        if L2F and n == 8:
            srd(e, SWQ, sDBG, sDBG + 1, 256)
            e.valu(f"v_mov_b32 {vr(T+3)}, 0", w=[T+3])
            e.buf_load(T + 4, 1, T + 3, SWQ, "0", flags=" sc1")
        if L2F and n == 10:
            e.valu(f"v_readfirstlane_b32 {sr(sRT)}, {vr(T+4)}", r=[T+4], kind="readlane", sw=[sRT])
            e.salu(f"s_cmp_lg_u32 {sr(sRT)}, 0", sr_=[sRT])
            e.raw("s_cbranch_scc1 NONCE_OK")
            st0 = e.snapshot()
            e.raw(f"s_mov_b32 {sr(sT1)}, 0")
            e.label("NONCE_LOOP")
            e.raw(f"buffer_load_dword {vr(T+4)}, {vr(T+3)}, {sr(SWQ, 4)}, 0 offen sc1")
            e.raw("s_waitcnt vmcnt(0)")
            e.raw(f"v_readfirstlane_b32 {sr(sRT)}, {vr(T+4)}")
            e.raw(f"s_add_u32 {sr(sT1)}, {sr(sT1)}, 1")
            e.raw("s_nop 3")
            e.raw(f"s_cmp_lg_u32 {sr(sRT)}, 0")
            e.raw("s_cbranch_scc1 NONCE_OK")
            e.raw("s_sleep 8")
            e.raw(f"s_cmp_lt_u32 {sr(sT1)}, 0x100000")
            e.raw("s_cbranch_scc1 NONCE_LOOP")
            e.label("NONCE_OK")
            e.restore(st0); e.s.t += 1
            srd(e, SWQ, 56, 57, 0x10000000)
            e.raw(f"s_getreg_b32 {sr(sXV)}, hwreg(HW_REG_XCC_ID, 0, 4)")
            e.salu(f"s_lshl_b32 {sr(sXV)}, {sr(sXV)}, 28")
            e.salu(f"s_xor_b32 {sr(sXV)}, {sr(sXV)}, {sr(sRT)}")
            e.salu(f"s_lshl_b32 {sr(sFast)}, {sr(sBr)}, 3")
            e.salu(f"s_add_u32 {sr(sFast)}, {sr(sFast)}, {sr(sB)}")
            e.salu(f"s_lshl_b32 {sr(sFast)}, {sr(sFast)}, 2")
            e.salu(f"s_add_u32 {sr(sFast)}, {sr(sFast)}, {sr(sHG)}")
            e.salu(f"s_lshl_b32 {sr(sFast)}, {sr(sFast)}, 6")
            e.salu(f"s_add_u32 {sr(sFast)}, {sr(sFast)}, {WS_F1 + 32768}")
            e.salu(f"s_lshl_b32 {sr(sT0)}, {sr(sHL)}, 2")
            e.salu(f"s_add_u32 {sr(sT0)}, {sr(sT0)}, {sr(sFast)}")
            e.valu(f"v_mov_b32 {vr(T+5)}, {sr(sXV)}", w=[T+5])
            e.salu(f"s_cmp_eq_u32 {sr(sW)}, 0")
            e.salu(f"s_cselect_b32 exec_lo, 1, 0")
            e.salu(f"s_mov_b32 exec_hi, 0")
            e.buf_store(T + 5, 1, T + 3, SWQ, sT0, flags=" sc1")
            set_exec_all(e)
        if opts.get("dyn") and n == 15:
            srd(e, SX, sDBG, sDBG + 1, 256)
            e.salu(f"s_lshl_b32 {sr(sT0)}, {sr(sBr)}, 2")
            e.salu(f"s_add_u32 {sr(sT0)}, {sr(sT0)}, {sr(sB)}")
            e.salu(f"s_lshl_b32 {sr(sT0)}, {sr(sT0)}, 2")
            e.salu(f"s_add_u32 {sr(sT0)}, {sr(sT0)}, {sr(sHG)}")
            e.salu(f"s_lshl_b32 {sr(sT0)}, {sr(sT0)}, 2")
            e.salu(f"s_sub_u32 {sr(sT0)}, {sr(sT0)}, {64 - 4}")
            e.valu(f"v_mov_b32 {vr(T+5)}, 1", w=[T+5])
            e.valu(f"v_mov_b32 {vr(T+6)}, 0", w=[T+6])
            e.salu(f"s_or_b32 {sr(sT1)}, {sr(sW)}, {sr(sMode)}")
            e.salu(f"s_cmp_eq_u32 {sr(sT1)}, 0")
            e.salu(f"s_cselect_b32 exec_lo, 1, 0")
            e.salu(f"s_mov_b32 exec_hi, 0")
            e.raw(f"buffer_atomic_add {vr(T+5)}, {vr(T+6)}, {sr(SX, 4)}, {sr(sT0)} offen sc0")
            e.s.vm.append(("ticket", frozenset([T+5])))
            set_exec_all(e)
        if L2F and n == 14:
            e.valu(f"v_and_b32 {vr(T+3)}, 7, {vr(lane)}", w=[T+3], r=[lane])
            e.valu(f"v_lshlrev_b32 {vr(T+3)}, 2, {vr(T+3)}", w=[T+3], r=[T+3])
            e.buf_load(T + 4, 1, T + 3, SWQ, sFast, flags=" sc1")
        if FUSED and not L2F and n == opts.get("noncestep", 8):
            NV = T + 4
            srd(e, SWQ, sDBG, sDBG + 1, 256)
            e.salu(f"s_or_b32 {sr(sRT)}, {sr(sRT)}, 1")
            e.valu(f"v_mov_b32 {vr(NV)}, {sr(sRT)}", w=[NV])
            e.valu(f"v_mov_b32 {vr(NV+1)}, 0", w=[NV+1])
            e.valu(f"v_mov_b32 {vr(T+3)}, 0", w=[T+3])
            e.salu(f"s_cmp_eq_u32 {sr(sW)}, 0")
            e.salu(f"s_cselect_b32 exec_lo, 1, 0")
            e.salu(f"s_mov_b32 exec_hi, 0")
            e.raw(f"buffer_atomic_cmpswap {vr(NV, 2)}, {vr(T+3)}, {sr(SWQ, 4)}, 0 offen sc0")
            e.s.vm.append(("nonce", frozenset([NV])))
            set_exec_all(e)
        e.variant(isw(n), lambda: sm2_block(n), lambda: None)
        if n + 1 <= 15:
            e.variant(isw(n + 1), lambda: qk_seg(n + 1, True, sp1()), lambda: qk_seg(n + 1, False, sp1()))
        else:
            for c, _ in sp1(): c()
    e.variant(isw(15), lambda: pv_seg(15, True, []), lambda: pv_seg(15, False, []))

    if "nobar" in EXP: e.barrier = _bar
    stamp("attend")
    if L2F:
        e.valu(f"v_cmp_ne_u32 vcc, {sr(sXV)}, {vr(T+4)}", r=[T+4], sw=["vcc"])
        e.salu(f"s_cmp_eq_u64 vcc, 0", sr_=["vcc"])
        e.salu(f"s_cselect_b32 {sr(38)}, 1, 0")
    elif FUSED:
        e.valu(f"v_readfirstlane_b32 {sr(sT0)}, {vr(T+4)}", r=[T+4], kind="readlane", sw=[sT0])
        e.salu(f"s_cmp_eq_u32 {sr(sT0)}, 0", sr_=[sT0])
        e.salu(f"s_cselect_b32 {sr(sRT)}, {sr(sRT)}, {sr(sT0)}")
    def ostore(src, vo, so):
        if L2F:
            e.variant(f"s_cmp_eq_u32 {sr(38)}, 0", lambda: e.buf_store(src, 4, vo, SO, so, flags=" sc1"), lambda: e.buf_store(src, 4, vo, SO, so, flags={1: "", 2: " nt", 3: " sc0", 4: " sc0 nt"}[L2F]))
        else:
            e.buf_store(src, 4, vo, SO, so, flags=OSF)
    OSF = {0: "", 1: " sc1", 2: " sc0 sc1", 3: " sc1 nt"}[opts.get("osf", 1)] if FUSED else ""
    assert FUSED
    tt = T + 6
    CA = [VREG_V, VREG_V + HS, VREG_K, VREG_K + HS]
    ML = VREG_V + 1 * HS
    e.salu(f"s_and_b32 {sr(sT0)}, {sr(sW)}, 1", sr_=[])
    e.salu(f"s_lshl_b32 {sr(sT0)}, {sr(sT0)}, 13")
    e.salu(f"s_lshr_b32 {sr(sT1)}, {sr(sW)}, 1")
    e.salu(f"s_mul_i32 {sr(sT1)}, {sr(sT1)}, {VREG_K}")
    e.salu(f"s_add_u32 {sr(sT0)}, {sr(sT0)}, {sr(sT1)}")
    e.valu(f"v_lshlrev_b32 {vr(t3)}, 4, {vr(lane)}", w=[t3], r=[lane])
    for t in range(3):
        e.valu(f"v_add_f32 {vr(L[t][0])}, {vr(L[t][0])}, {vr(L[t][1])}", w=[L[t][0]], r=L[t])
    AD = S[0][0]
    for s in range(4):
        e.salu(f"s_lshl_b32 {sr(sT1)}, {sr(sS+s)}, 5")
        e.salu(f"s_add_u32 {sr(sT1)}, {sr(sT1)}, {sr(sT0)}")
        e.valu(f"v_add_u32 {vr(AD+s)}, {sr(sT1)}, {vr(t3)}", w=[AD+s], r=[t3])
    tl = [S[0][1], S[0][1] + 1, S[0][1] + 2]
    for op in ("v_permlane16_swap_b32", "v_permlane32_swap_b32"):
        for t in range(3): e.valu(f"v_mov_b32 {vr(tl[t])}, {vr(L[t][0])}", w=[tl[t]], r=[L[t][0]])
        for t in range(3): e.valu(f"{op} {vr(L[t][0])}, {vr(tl[t])}", w=[L[t][0], tl[t]], r=[L[t][0], tl[t]], kind="permlane")
        for t in range(3): e.valu(f"v_add_f32 {vr(L[t][0])}, {vr(L[t][0])}, {vr(tl[t])}", w=[L[t][0]], r=[L[t][0], tl[t]])
    for s in range(4):
        rb = (VREG_V if s < 2 else VREG_K) + 2*HS + 8192*(s&1)
        e.ds_write("ds_write_b128", AD + s, O2 + 8*s, 4, 2 * HS, lds=(rb, rb + 4096))
        e.ds_write("ds_write_b128", AD + s, O2 + 8*s + 4, 4, 2 * HS + 1024, lds=(rb + 4096, rb + 8192))
    e.valu(f"v_mov_b32 {vr(S2)}, {vr(NM[2])}", w=[S2], r=[NM[2]])
    e.valu(f"v_mov_b32 {vr(S2+1)}, {vr(L[2][0])}", w=[S2+1], r=[L[2][0]])
    e.salu(f"s_lshl_b32 {sr(sT1)}, {sr(sW)}, 9")
    e.valu(f"v_lshlrev_b32 {vr(t4)}, 3, {vr(lane)}", w=[t4], r=[lane])
    e.valu(f"v_add_u32 {vr(tt)}, {sr(sT1)}, {vr(t4)}", w=[tt], r=[t4])
    e.ds_write("ds_write_b64", tt, S2, 2, ML, lds=(ML, ML + 2048))
    stamp("e1")
    VO = S[1][1]
    for s in range(4):
        e.salu(f"s_lshl_b32 {sr(sT0)}, {sr(sS+s)}, 4")
        e.valu(f"v_add_u32 {vr(VO+s)}, {sr(sT0)}, {vr(t3)}", w=[VO+s], r=[t3])
    e.salu(f"s_mul_i32 {sr(sOoff)}, {sr(sBr)}, {1152*8192}")
    e.salu(f"s_lshl_b32 {sr(sT0)}, {sr(sH)}, 12")
    e.salu(f"s_add_u32 {sr(sOoff)}, {sr(sOoff)}, {sr(sT0)}")
    RC = [S[1][0], S[1][0] + 2]
    ZF = S[1][0] + 4
    CK = FR
    for t in range(2):
        e.trans(f"v_rcp_f32 {vr(RC[t])}, {vr(L[t][0])}", w=[RC[t]], r=[L[t][0]])
    for k in range(4): e.valu(f"v_mov_b32 {vr(ZF+k)}, 0", w=[ZF+k])
    for t in range(2):
        e.valu(f"v_mov_b32 {vr(RC[t]+1)}, {vr(RC[t])}", w=[RC[t]+1], r=[RC[t]])
    def pack_pk(a, rc):
        for k in range(4):
            e.valu(f"v_pk_mul_f32 {vr(a+2*k, 2)}, {vr(a+2*k, 2)}, {vr(rc, 2)}", w=[a+2*k, a+2*k+1], r=[a+2*k, a+2*k+1, rc, rc+1])
        for k in range(4):
            e.valu(f"v_cvt_pk_bf16_f32 {vr(a+k)}, {vr(a+2*k)}, {vr(a+2*k+1)}", w=[a+k], r=[a+2*k, a+2*k+1])
    nck = 0
    for t in range(2):
        e.salu(f"s_lshl_b32 {sr(sT0)}, {sr(sX+t)}, 3")
        e.salu(f"s_add_u32 {sr(sT0)}, {sr(sT0)}, {sr(sOoff)}")
        for s in range(4):
            pack_pk(OA[t] + 8*s, RC[t])
            ostore(OA[t] + 8*s, VO + s, sT0)
            e.mfma(CK, ZF, OA[t] + 8*s, None if nck == 0 else CK); nck += 1
    stamp("e2")
    e.valu(f"v_pk_mul_f32 {vr(CK+4, 2)}, {vr(O2, 2)}, {vr(ZF, 2)}", w=[CK+4, CK+5], r=[O2, O2+1, ZF, ZF+1])
    for k in range(1, 16):
        e.valu(f"v_pk_fma_f32 {vr(CK+4, 2)}, {vr(O2+2*k, 2)}, {vr(ZF, 2)}, {vr(CK+4, 2)}", w=[CK+4, CK+5], r=[O2+2*k, O2+2*k+1, ZF, ZF+1, CK+4, CK+5])
    chk = CK + 4
    e.valu(f"v_add_f32 {vr(chk)}, {vr(chk)}, {vr(chk+1)}", w=[chk], r=[chk, chk+1])
    for t in range(3):
        e.valu(f"v_add_f32 {vr(chk)}, {vr(chk)}, {vr(L[t][0])}", w=[chk], r=[chk, L[t][0]])
    e.valu(f"v_add_f32 {vr(chk)}, {vr(chk)}, {vr(CK)}", w=[chk], r=[chk, CK])
    e.salu(f"s_mov_b32 {sr(sT0)}, {f32(2.0**30):#x}")
    e.valu(f"v_cmp_ngt_f32 vcc, {sr(sT0)}, {vr(chk)}", r=[chk], sw=["vcc"])
    e.salu(f"s_lshl_b32 {sr(sT1)}, {sr(sW)}, 2")
    e.valu(f"v_mov_b32 {vr(tt)}, {sr(sT1)}", w=[tt])
    e.salu(f"s_cmp_lg_u64 vcc, 0", sr_=["vcc"])
    e.salu(f"s_cselect_b32 {sr(sT0)}, 1, 0")
    e.valu(f"v_mov_b32 {vr(S2+2)}, {sr(sT0)}", w=[S2+2])
    e.ds_write("ds_write_b32", tt, S2 + 2, 1, ML + 2048, lds=(ML + 2048, ML + 2064))
    sTk = 39
    if opts.get("dyn"):
        e.valu(f"v_readfirstlane_b32 {sr(sT0)}, {vr(T+5)}", r=[T+5], kind="readlane", sw=[sT0])
        e.valu(f"v_mov_b32 {vr(S2+3)}, {sr(sT0)}", w=[S2+3], sr_=[sT0])
    else:
        e.valu(f"v_mov_b32 {vr(S2+3)}, {sr(sRT)}", w=[S2+3])
    e.ds_write("ds_write_b32", tt, S2 + 3, 1, ML + 2064, lds=(ML + 2064, ML + 2080))
    e.wait_all(vm=False)
    e.barrier()
    stamp("e3")
    FL = FR
    e.valu(f"v_mov_b32 {vr(tt)}, 0", w=[tt])
    e.ds_read("ds_read_b128", FL, 4, tt, ML + 2048, lds=(ML + 2048, ML + 2064))
    e.ds_read("ds_read_b32", FR + 16, 1, tt, ML + 2064, lds=(ML + 2064, ML + 2080))
    MLR = FR + 4
    for w in range(4):
        e.ds_read("ds_read_b64", MLR + 2*w, 2, t4, ML + 512 * w, lds=(ML, ML + 2048))
    PR = O2
    e.salu(f"s_add_u32 {sr(sT1)}, {sr(sW2048)}, {2*HS}")
    e.valu(f"v_add_u32 {vr(tt)}, {sr(sT1)}, {vr(t3)}", w=[tt], r=[t3])
    for w in range(4):
        e.ds_read("ds_read_b128", PR + 8*w, 4, tt, CA[w], lds=(CA[w] + 2*HS, CA[w] + 3*HS))
        e.ds_read("ds_read_b128", PR + 8*w + 4, 4, tt, CA[w] + 1024)
    e.valu(f"v_or3_b32 {vr(FL)}, {vr(FL)}, {vr(FL+1)}, {vr(FL+2)}", w=[FL], r=[FL, FL+1, FL+2])
    e.valu(f"v_or_b32 {vr(FL)}, {vr(FL)}, {vr(FL+3)}", w=[FL], r=[FL, FL+3])
    if opts.get("dyn"):
        e.valu(f"v_readfirstlane_b32 {sr(sT1)}, {vr(FR+16)}", r=[FR+16], kind="readlane", sw=[sT1])
        e.salu(f"s_cmp_eq_u32 {sr(sMode)}, 0", sr_=[sT1])
        e.salu(f"s_cselect_b32 {sr(sTk)}, {sr(sT1)}, {sr(sTk)}")
    else:
        e.valu(f"v_readfirstlane_b32 {sr(sRT)}, {vr(FR+16)}", r=[FR+16], kind="readlane", sw=[sRT])
    e.valu(f"v_readfirstlane_b32 {sr(sT0)}, {vr(FL)}", r=[FL], kind="readlane", sw=[sT0])
    e.salu(f"s_sub_u32 {sr(sT0)}, {sr(sT0)}, {sr(sMode)}", sr_=[sT0])
    e.salu(f"s_cmp_eq_u32 {sr(sT0)}, 1")
    e.raw("s_cbranch_scc1 K1_FALLBACK")
    fb_state = e.snapshot()
    nM = FR + 12
    e.valu(f"v_min3_f32 {vr(nM)}, {vr(MLR)}, {vr(MLR+2)}, {vr(MLR+4)}", w=[nM], r=[MLR, MLR+2, MLR+4])
    e.valu(f"v_min_f32 {vr(nM)}, {vr(nM)}, {vr(MLR+6)}", w=[nM], r=[nM, MLR+6])
    for w in range(4):
        e.valu(f"v_sub_f32 {vr(MLR+2*w)}, {vr(nM)}, {vr(MLR+2*w)}", w=[MLR+2*w], r=[nM, MLR+2*w])
    for w in range(4):
        e.trans(f"v_exp_f32 {vr(MLR+2*w)}, {vr(MLR+2*w)}", w=[MLR+2*w], r=[MLR+2*w])
    Lt = FR + 13
    e.valu(f"v_mul_f32 {vr(Lt)}, {vr(MLR)}, {vr(MLR+1)}", w=[Lt], r=[MLR, MLR+1])
    for w in range(1, 4):
        e.valu(f"v_fmac_f32 {vr(Lt)}, {vr(MLR+2*w)}, {vr(MLR+2*w+1)}", w=[Lt], r=[Lt, MLR+2*w, MLR+2*w+1])
    e.trans(f"v_rcp_f32 {vr(Lt)}, {vr(Lt)}", w=[Lt], r=[Lt])
    for k in range(8):
        e.valu(f"v_mul_f32 {vr(PR+k)}, {vr(MLR)}, {vr(PR+k)}", w=[PR+k], r=[MLR, PR+k])
        for w in range(1, 4):
            e.valu(f"v_fmac_f32 {vr(PR+k)}, {vr(MLR+2*w)}, {vr(PR+8*w+k)}", w=[PR+k], r=[PR+k, MLR+2*w, PR+8*w+k])
    pack_scaled(PR, PR, vr(Lt), scale_r=[Lt])
    e.salu(f"s_lshl_b32 {sr(sT0)}, {sr(sX+2)}, 3")
    e.salu(f"s_add_u32 {sr(sT0)}, {sr(sT0)}, {sr(sOoff)}")
    ostore(PR, VO + 0, sT0)
    if FUSED:
        stamp("epi")
        (phase_o2 if opts.get("dyn") else phase_o3 if opts.get("k512") else phase_o)(e, opts, stamp, dict(locals()))
    if opts.get("stamp", 0): e.wait_all()
    stamp("end"); stamp("rend", True)
    stamp.flush(56, sW, FR, SK)
    e.label("K1_END")
    e.raw("s_endpgm")
    e.restore(fb_state)
    e.label("K1_FALLBACK")
    e.wait_all(force=True)
    e.barrier()
    e.salu(f"s_mov_b32 {sr(sMode)}, 1")
    e.salu(f"s_mov_b32 {sr(sKoff)}, {sr(sItem)}")
    e.salu(f"s_mov_b32 {sr(sVoff)}, {sr(sItem)}")
    for n in range(FIRSTD):
        for c in issue_kv(n): c()
    VF = S[1][1]
    e.valu(f"v_lshlrev_b32 {vr(tt)}, 8, {vr(j)}", w=[tt], r=[j])
    e.valu(f"v_lshl_add_u32 {vr(tt)}, {vr(g)}, 4, {vr(tt)}", w=[tt], r=[g, tt])
    for s in range(4):
        e.valu(f"v_add_u32 {vr(VF+s)}, {sr(sS+s)}, {vr(tt)}", w=[VF+s], r=[tt])
    for t in range(3):
        e.valu(f"v_mov_b32 {vr(L[t][0])}, 0xff800000", w=[L[t][0]])
    e.salu(f"s_mov_b32 {sr(sT0)}, {sr(sItem)}")
    e.salu(f"s_add_u32 {sr(sT1)}, {sr(sItem)}, {512*256}")
    e.label("K1_FB_LOOP")
    for s in range(4):
        e.buf_load(FR + 4*s, 4, VF + s, SK, sT0)
    Sx = [S[0][0], S[0][0] + 4, S[0][1]]
    for s in range(4):
        for t in range(3):
            e.mfma(Sx[t], FR + 4*s, QF[t] + 4*s, None if s == 0 else Sx[t])
    for t in range(3):
        m = L[t][0]
        e.valu(f"v_max3_f32 {vr(m)}, {vr(m)}, {vr(Sx[t])}, {vr(Sx[t]+1)}", w=[m], r=[m, Sx[t], Sx[t]+1])
        e.valu(f"v_max3_f32 {vr(m)}, {vr(m)}, {vr(Sx[t]+2)}, {vr(Sx[t]+3)}", w=[m], r=[m, Sx[t]+2, Sx[t]+3])
    e.salu(f"s_add_u32 {sr(sT0)}, {sr(sT0)}, {16*256}")
    e.salu(f"s_cmp_lt_u32 {sr(sT0)}, {sr(sT1)}")
    e.nop(8)
    e.raw("s_cbranch_scc1 K1_FB_LOOP")
    for t in range(3):
        xlane_reduce(e, "v_max_f32", L[t][0], tt)
        for k in range(4):
            e.valu(f"v_sub_f32 {vr(NM[t]+k)}, 0, {vr(L[t][0])}", w=[NM[t]+k], r=[L[t][0]])
    e.wait_all(force=True)
    e.barrier()
    e.nop(8)
    e.raw("s_branch ATT_ENTRY")
    return e, nv

def gen_k2(opts):
    NSPL = opts.get("nsplit", 4)
    nk = 128 // NSPL
    nwg = 16 * 4 * NSPL
    e = Em()
    SX, SWO, SP = 4, 8, 12
    sW, sW2048, sWoff = 24, 25, 26
    sX = 29; sS = 32
    sBB, sN, sKs, sT0, sT1, sBr = 58, 59, 60, 61, 62, 63
    A = Alloc(0)
    O0 = A.get(32, 4); O1 = A.get(32, 4); O2 = A.get(8, 4)
    FR = A.get(32, 4)
    NXP = opts.get("k2_nxp", 10)
    XB = A.get(NXP * 8, 4)
    XS2 = A.get(8, 4)
    AW = [A.get(1) for _ in range(8)]
    VW0 = A.get(1); VW1 = A.get(1); VX = A.get(1)
    T = A.get(8)
    nv = A.n
    def XP(ks, t): return XB + ((ks % NXP) * 2 + t) * 4 if t < 2 else XS2 + 4 * (ks & 1)
    e.salu(f"s_cmp_ge_u32 s2, {nwg}")
    e.raw("s_cbranch_scc1 K2_END")
    e.raw("s_load_dwordx2 s[36:37], s[0:1], 32")
    e.raw("s_load_dwordx2 s[38:39], s[0:1], 72")
    e.raw("s_load_dwordx2 s[56:57], s[0:1], 96")
    stamp = Stamps(e, opts.get("stamp", 0))
    stamp("start"); stamp("rstart", True)
    lane, g, j = lane_setup(e, T, sW)
    e.salu(f"s_and_b32 {sr(sT0)}, s2, 7")
    e.salu(f"s_lshr_b32 {sr(sT1)}, s2, 3")
    e.salu(f"s_lshr_b32 {sr(sBr)}, {sr(sT0)}, 2")
    e.salu(f"s_and_b32 {sr(sKs)}, {sr(sT0)}, 3")
    e.salu(f"s_and_b32 {sr(sN)}, {sr(sT1)}, 3")
    e.salu(f"s_lshr_b32 {sr(sT1)}, {sr(sT1)}, 2")
    e.salu(f"s_and_b32 {sr(sBB)}, {sr(sT1)}, 7")
    if NSPL == 8:
        e.salu(f"s_lshr_b32 {sr(sT1)}, {sr(sT1)}, 3")
        e.salu(f"s_lshl_b32 {sr(sKs)}, {sr(sKs)}, 1")
        e.salu(f"s_add_u32 {sr(sKs)}, {sr(sKs)}, {sr(sT1)}")
    else:
        assert NSPL == 4
    e.salu(f"s_lshl_b32 {sr(sT0)}, {sr(sBr)}, 3")
    e.salu(f"s_add_u32 {sr(sBB)}, {sr(sBB)}, {sr(sT0)}")
    e.salu(f"s_lshl_b32 {sr(sW2048)}, {sr(sW)}, 11", sr_=[sW])
    for s in range(4):
        e.salu(f"s_add_u32 {sr(sS+s)}, {sr(sW)}, {s}")
        e.salu(f"s_and_b32 {sr(sS+s)}, {sr(sS+s)}, 3")
        e.salu(f"s_lshl_b32 {sr(sS+s)}, {sr(sS+s)}, 6")
    e.salu(f"s_mul_i32 {sr(sWoff)}, {sr(sKs)}, {nk*32*1024}")
    e.salu(f"s_lshl_b32 {sr(sT0)}, {sr(sN)}, 8")
    e.salu(f"s_add_u32 {sr(sWoff)}, {sr(sWoff)}, {sr(sT0)}")
    e.salu(f"s_mul_i32 {sr(sT0)}, {sr(sBB)}, 144")
    e.salu(f"s_lshl_b32 {sr(sT1)}, {sr(sW)}, 5")
    e.salu(f"s_add_u32 {sr(sX)}, {sr(sT0)}, {sr(sT1)}")
    e.salu(f"s_add_u32 {sr(sX+1)}, {sr(sX)}, 16")
    e.salu(f"s_add_u32 {sr(sX+2)}, {sr(sT0)}, 128")
    e.salu(f"s_mul_i32 {sr(sT0)}, {sr(sKs)}, {nk*1024}")
    for t in range(3):
        e.salu(f"s_lshl_b32 {sr(sX+t)}, {sr(sX+t)}, 13")
        e.salu(f"s_add_u32 {sr(sX+t)}, {sr(sX+t)}, {sr(sT0)}")
    rho = w_dma_chunk(e, T, g, j, sW, VW0)
    e.valu(f"v_lshl_add_u32 {vr(VW0)}, {vr(rho)}, 10, {vr(VW0)}", w=[VW0], r=[rho, VW0])
    e.valu(f"v_add_u32 {vr(VW1)}, {4*1024-1024}, {vr(VW0)}", w=[VW1], r=[VW0])
    e.valu(f"v_lshlrev_b32 {vr(VX)}, 4, {vr(lane)}", w=[VX], r=[lane])
    e.raw("s_waitcnt lgkmcnt(0)")
    e.salu(f"s_cmp_eq_u32 {sr(sBr)}, 1")
    srd_sel(e, SWO, 36, 38, 4096 * 512 * 2)
    srd(e, SX, 56, 57, 2 * 1152 * 4096 * 2)
    srd(e, SP, 56, 57, WS_P + nwg * 144 * 128 * 4)
    NSL = 3
    NB = nk // 2
    XSH = VREG_V + 3 * HS
    sRot, sWb, sEX, sXo = 64, 65, 68, 66
    K2F = " nt" if opts.get("k2nt", 0) else ""
    e.salu(f"s_lshl_b32 {sr(sRot)}, {sr(sBB)}, {1 if NB >= 16 else 0}")
    e.salu(f"s_mul_i32 {sr(sT0)}, {sr(sN)}, {5 if NB >= 16 else 3}")
    e.salu(f"s_add_u32 {sr(sRot)}, {sr(sRot)}, {sr(sT0)}")
    if not opts.get("k2rot", 1): e.salu(f"s_mov_b32 {sr(sRot)}, 0")
    e.salu(f"s_and_b32 {sr(sT1)}, {sr(sW)}, 1")
    e.salu(f"s_sub_u32 {sr(sEX+1)}, 0, {sr(sT1)}")
    e.salu(f"s_not_b32 {sr(sEX)}, {sr(sEX+1)}")
    e.salu(f"s_lshr_b32 {sr(sT0)}, {sr(sW)}, 1")
    e.salu(f"s_lshl_b32 {sr(67)}, {sr(sT0)}, 10")
    e.salu(f"s_add_u32 {sr(sX+2)}, {sr(sX+2)}, {sr(67)}")
    def issue_w(b):
        sl = b % NSL
        tg = ("W", b)
        out = []
        for h in range(2):
            base = (VREG_K if h == 0 else VREG_V) + sl * HS
            def c0(base=base, h=h):
                if h == 0:
                    e.salu(f"s_add_u32 {sr(sT0)}, {sr(sRot)}, {b}")
                    e.salu(f"s_and_b32 {sr(sT0)}, {sr(sT0)}, {NB-1}")
                    e.salu(f"s_lshl_b32 {sr(sWb)}, {sr(sT0)}, 16")
                    e.salu(f"s_add_u32 {sr(sWb)}, {sr(sWb)}, {sr(sWoff)}")
                    e.salu(f"s_lshl_b32 {sr(sT0)}, {sr(sT0)}, 11")
                    e.salu(f"s_add_u32 {sr(sT1)}, {sr(sT0)}, {sr(sX+2)}")
                e.salu(f"s_add_u32 m0, {sr(sW2048)}, {base}", m0=True)
                e.dma(VW0, SWO, sWb, 0, flags=K2F, tag=tg, lds=(base, base + 4096))
                e.dma(VW1, SWO, sWb, 1024, flags=K2F, tag=tg, lds=(base + 4096, base + 8192))
                if h == 0:
                    e.salu(f"s_add_u32 {sr(sWb)}, {sr(sWb)}, {32*1024}")
                    e.salu(f"s_add_u32 m0, {sr(67)}, {XSH + 2048*sl}", m0=True)
                    e.salu(f"s_mov_b64 exec, {sr(sEX, 2)}")
                    e.dma(VX, SX, sT1, 0, flags=K2F, tag=tg, lds=(XSH + 2048*sl, XSH + 2048*sl + 2048))
                    e.salu("s_mov_b64 exec, -1")
            out.append(c0)
        return out
    def load_x(ks, t):
        if t == 0:
            e.salu(f"s_add_u32 {sr(sXo)}, {sr(sRot)}, {ks//2}")
            e.salu(f"s_and_b32 {sr(sXo)}, {sr(sXo)}, {NB-1}")
            e.salu(f"s_lshl_b32 {sr(sXo)}, {sr(sXo)}, 11")
        e.salu(f"s_add_u32 s3, {sr(sXo)}, {sr(sX+t)}")
        e.buf_load(XP(ks, t), 4, VX, SX, 3, 0, flags=K2F)
        e.buf_load(XP(ks + 1, t), 4, VX, SX, 3, 1024, flags=K2F)
    def read_xs(ks):
        e.ds_read("ds_read_b128", XP(ks, 2), 4, VX, XSH + 2048 * ((ks // 2) % NSL) + 1024 * (ks & 1), lds=(XSH + 2048 * ((ks // 2) % NSL), XSH + 2048 * ((ks // 2) % NSL) + 2048))
    for c in issue_w(0): c()
    for t in range(2): load_x(0, t)
    for c in issue_w(1): c()
    for t in range(2): load_x(2, t)
    for c in issue_w(2): c()
    for ks in range(4, NXP, 2):
        for t in range(2): load_x(ks, t)
    w_addr_setup(e, T, g, j, AW, sS)
    st = Stream(e, FR)
    def post_w(b):
        nb = b + 2
        return [lambda: read_xs(2 * b)] + (issue_w(nb) if nb < NB else [])
    def spread2(ks):
        out = []
        if ks % 2 == 0:
            out.append((lambda: read_xs(ks + 1), 1))
            if ks >= 2 and ks - 2 + NXP < nk:
                for t in range(2):
                    out.append((lambda t=t, k=ks - 2 + NXP: load_x(k, t), 2))
        return out
    stamp("issued")
    gemm_phase(e, st, nk, AW, O0, O1, O2, XP, lambda b: b % NSL, post_w, spread2,
               after_first=lambda: read_xs(0), stamp=stamp)
    stamp("gemm")
    e.salu(f"s_lshl_b32 {sr(sT0)}, {sr(sKs)}, 4")
    e.salu(f"s_add_u32 {sr(sT0)}, {sr(sT0)}, {sr(sBB)}")
    e.salu(f"s_lshl_b32 {sr(sT0)}, {sr(sT0)}, 2")
    e.salu(f"s_add_u32 {sr(sT0)}, {sr(sT0)}, {sr(sN)}")
    e.salu(f"s_mul_i32 {sr(sT0)}, {sr(sT0)}, {9*8192}")
    e.salu(f"s_add_u32 {sr(sT0)}, {sr(sT0)}, {WS_P}")
    e.salu(f"s_lshl_b32 {sr(sT1)}, {sr(sW)}, 14")
    e.salu(f"s_add_u32 {sr(sX)}, {sr(sT0)}, {sr(sT1)}")
    e.salu(f"s_add_u32 {sr(sX+1)}, {sr(sX)}, 8192")
    e.salu(f"s_add_u32 {sr(sX+2)}, {sr(sT0)}, {8*8192}")
    t3 = T + 3
    VO = FR
    e.valu(f"v_lshlrev_b32 {vr(t3)}, 4, {vr(lane)}", w=[t3], r=[lane])
    for s in range(4):
        e.salu(f"s_lshl_b32 {sr(sT1)}, {sr(sS+s)}, 5")
        e.valu(f"v_add_u32 {vr(VO+s)}, {sr(sT1)}, {vr(t3)}", w=[VO+s], r=[t3])
    for t, acc in enumerate((O0, O1)):
        for i in range(8):
            e.buf_store(acc + 4*i, 4, VO + i // 2, SP, sX + t, 1024 * (i & 1))
    for i in range(2):
        e.buf_store(O2 + 4*i, 4, VO, SP, sX + 2, 1024 * i)
    if opts.get("stamp", 0): e.wait_all()
    stamp("end"); stamp("rend", True)
    stamp.flush(56, sW, FR + 8, SX)
    e.label("K2_END")
    e.raw("s_endpgm")
    return e, nv, nwg

def gen_k3(opts):
    NSPL = opts.get("nsplit", 4)
    nwg = 16 * 4 * 9
    e = Em()
    SP, SOUT = 4, 8
    e.salu(f"s_cmp_ge_u32 s2, {nwg}")
    e.raw("s_cbranch_scc1 K3_END")
    e.raw("s_load_dwordx2 s[20:21], s[0:1], 80")
    e.raw("s_load_dwordx2 s[22:23], s[0:1], 96")
    lane, g, j, t3, t4, va, vb, vo = 1, 2, 3, 4, 5, 6, 7, 8
    e.valu(f"v_lshrrev_b32 {vr(g)}, 4, v0", w=[g], r=[0])
    e.valu(f"v_and_b32 {vr(j)}, 15, v0", w=[j], r=[0])
    e.valu(f"v_and_b32 {vr(lane)}, 63, v0", w=[lane], r=[0])
    e.valu(f"v_lshrrev_b32 {vr(t3)}, 6, v0", w=[t3], r=[0])
    e.valu(f"v_lshlrev_b32 {vr(t3)}, 11, {vr(t3)}", w=[t3], r=[t3])
    e.valu(f"v_lshl_add_u32 {vr(t3)}, {vr(lane)}, 4, {vr(t3)}", w=[t3], r=[lane, t3])
    e.valu(f"v_and_b32 {vr(t4)}, 1, {vr(g)}", w=[t4], r=[g])
    e.valu(f"v_lshl_add_u32 {vr(va)}, {vr(t4)}, 10, {vr(t3)}", w=[va], r=[t4, t3])
    e.valu(f"v_xor_b32 {vr(vb)}, 0x400, {vr(va)}", w=[vb], r=[va])
    e.salu("s_mul_hi_u32 s12, s2, 0x1c71c71d")
    e.salu("s_mul_i32 s13, s12, 9")
    e.salu("s_sub_u32 s13, s2, s13")
    e.salu("s_and_b32 s14, s12, 3")
    e.salu("s_lshr_b32 s15, s12, 2")
    e.salu("s_lshl_b32 s16, s2, 13")
    e.salu(f"s_add_u32 s16, s16, {WS_P}")
    e.salu("s_and_b32 s17, s15, 7")
    e.salu("s_mul_i32 s17, s17, 144")
    e.salu("s_lshl_b32 s18, s13, 4")
    e.salu("s_add_u32 s17, s17, s18")
    e.salu("s_lshl_b32 s17, s17, 11")
    e.salu("s_lshr_b32 s18, s15, 3")
    e.salu("s_lshl_b32 s18, s18, 10")
    e.salu("s_add_u32 s17, s17, s18")
    e.salu("s_lshl_b32 s18, s14, 8")
    e.salu("s_add_u32 s17, s17, s18")
    e.valu(f"v_lshlrev_b32 {vr(vo)}, 11, {vr(j)}", w=[vo], r=[j])
    e.valu(f"v_lshl_add_u32 {vr(vo)}, {vr(g)}, 4, {vr(vo)}", w=[vo], r=[g, vo])
    e.raw("s_waitcnt lgkmcnt(0)")
    srd(e, SP, 22, 23, WS_P + 64 * NSPL * 144 * 128 * 4)
    srd(e, SOUT, 20, 21, 8 * 144 * 1024 * 2)
    D = 12
    for k in range(NSPL):
        e.buf_load(D + 8*k, 4, va, SP, 16)
        e.buf_load(D + 8*k + 4, 4, vb, SP, 16)
        if k + 1 < NSPL:
            e.salu(f"s_add_u32 s16, s16, {64*9*8192}")
    for k in range(1, NSPL):
        for r in range(8):
            e.valu(f"v_add_f32 {vr(D+r)}, {vr(D+r)}, {vr(D+8*k+r)}", w=[D+r], r=[D+r, D+8*k+r])
    for k in range(4):
        e.valu(f"v_cvt_pk_bf16_f32 {vr(D+k)}, {vr(D+2*k)}, {vr(D+2*k+1)}", w=[D+k], r=[D+2*k, D+2*k+1])
    e.buf_store(D, 4, vo, SOUT, 17)
    e.label("K3_END")
    e.raw("s_endpgm")
    return e, D + 8 * NSPL, nwg

def header():
    ref = open(f"cdna_kernels/{NAME}.s.ref").read().splitlines()
    out = []
    for l in ref:
        if l.startswith("; Override") or "@launch" in l or l.startswith("; grid="):
            continue
        if not l.startswith(";"): break
        out.append(l)
    return "\n".join(out) + "\n"

def build(opts, path):
    Stream.MERGE = opts.get("merge", 0)
    e1, nv1 = gen_k1(opts)
    if any(k.startswith("a_") or k.startswith("b_") for k in opts):
        import re
        oa = dict(opts); ob = dict(opts)
        for k, v in opts.items():
            if k.startswith("a_"): oa[k[2:]] = v
            if k.startswith("b_"): ob[k[2:]] = v
        ea, _ = gen_k1(oa); eb, _ = gen_k1(ob)
        head = "    s_cmp_ge_u32 s2, 512\n    s_cbranch_scc1 K1_END\n"
        ta = ea.text(); tb = eb.text()
        assert ta.startswith(head) and tb.startswith(head)
        ta = head + ("    s_bitcmp0_b32 s2, 2\n" if opts.get("splitbr") else "    s_cmp_lt_u32 s2, 256\n") + "    s_cbranch_scc1 NOTB\n    s_getpc_b64 s[4:5]\nPCB:\n    s_add_u32 s4, s4, BSTART-PCB\n    s_addc_u32 s5, s5, 0\n    s_setpc_b64 s[4:5]\nNOTB:\n" + ta[len(head):]
        labs = set(re.findall(r"^(\w+):", tb, re.M))
        tb = re.sub(r"\b(" + "|".join(sorted(labs)) + r")\b", r"B\1", tb[len(head):])
        class X:
            cnt = {}; lines = ea.lines; cold = ea.cold
            def text(self): return ta + ".p2align 6\nBSTART:\n" + tb
        e1 = X()
    txt = header()
    if opts.get("fused"):
        txt += "; @launch grid=(512,1,1) block=(256,1,1) lds=81920\n"
        txt += '.amdgcn_target "amdgcn-amd-amdhsa--gfx950"\n'
        txt += kernel_wrap(NAME + "_kernel", e1.text(), nv1)
        open(path, "w").write(txt)
        print("fused vgpr", nv1, "lines", len(e1.lines), len(e1.cold))
        return
    e2, nv2, nwg2 = gen_k2(opts)
    e3, nv3, nwg3 = gen_k3(opts)
    ks = opts.get("kernels", "123")
    if "1" in ks: txt += f"; @launch kernel=attn_kernel grid=(512,1,1) block=(256,1,1) lds=81920\n"
    if "2" in ks: txt += f"; @launch kernel=oproj_kernel grid=({nwg2},1,1) block=(256,1,1) lds=81920\n"
    if "3" in ks: txt += f"; @launch kernel=reduce_kernel grid=({nwg3},1,1) block=(256,1,1) lds=0\n"
    txt += '.amdgcn_target "amdgcn-amd-amdhsa--gfx950"\n'
    txt += kernel_wrap("attn_kernel", e1.text(), nv1)
    txt += kernel_wrap("oproj_kernel", e2.text(), nv2)
    txt += kernel_wrap("reduce_kernel", e3.text(), nv3, 32)
    open(path, "w").write(txt)
    print("k1 vgpr", nv1, "counts", {k: v for k, v in e1.cnt.items() if v > 20})
    print("k2 vgpr", nv2, "k3 vgpr", nv3)

if __name__ == "__main__":
    opts = dict(fused=1, prio=3, kvd=2, warm=1, orot=2, nxb=2, onsl=3)
    path = f"cdna_kernels/{NAME}.s"
    for a in sys.argv[1:]:
        if "=" in a:
            k, v = a.split("=")
            opts[k] = int(v) if v.lstrip("-").isdigit() and k != "kernels" else v
        else:
            path = a
    build(opts, path)
```

```python
import sys, math, struct
sys.path.insert(0, "gen")
from em import Em, vr, sr, R

NAME = "concat_heads__mha_block_cached__gqa_block_cached__near_ridge"
def f32(x):
    return struct.unpack("<I", struct.pack("<f", x))[0]
CSCALE = math.log2(math.e) / math.sqrt(128.0)

VREG_V = 0
VREG_K = 40960
HS = 8192
KVSLOT = [4, 0, 1, 2, 3]
WS_O = 0
WS_P = 2 * 1152 * 4096 * 2

class Alloc:
    def __init__(self, start=0, limit=256):
        self.n = start; self.limit = limit
    def get(self, n, align=1):
        self.n = (self.n + align - 1) // align * align
        b = self.n; self.n += n
        assert self.n <= self.limit, ("out of regs", self.n)
        return b

def emit_segment(e, mf, pinned, spread):
    for c in pinned.get(-1, []): c()
    W = sum(w for _, w in spread)
    nM = len(mf)
    k = 0; cum = 0.0
    for i, m in enumerate(mf):
        m()
        for c in pinned.get(i, []): c()
        tgt = W * (i + 1) / nM
        while k < len(spread) and cum + spread[k][1] * 0.5 <= tgt:
            spread[k][0](); cum += spread[k][1]; k += 1
    while k < len(spread):
        spread[k][0](); k += 1

class Stream:
    def __init__(self, e, FR):
        self.e = e; self.FR = FR
        self.frags = []
        self.bars = {}
        self.prebar = {}
        self.atf = {}
    def place(self, F, items, start=1, stride=3):
        for k, c in enumerate(items):
            self.atf.setdefault(F - self.BD + start + k * stride, []).append(c)
    def slot(self, f):
        return self.FR + 4 * (f % 8)
    def add(self, reads):
        self.frags.append(reads); return len(self.frags) - 1
    def read(self, f):
        for (op, ro, n, addr, imm, rng) in self.frags[f]:
            self.e.ds_read(op, self.slot(f) + ro, n, addr, imm, lds=rng)
    MERGE = 0
    LA = 7
    BD = 5
    def start(self):
        for n in range(min(self.LA, len(self.frags))):
            assert not (n > 0 and n in self.bars)
            self.read(n)
    def after(self, f):
        e = self.e
        out = []; post = []
        N = len(self.frags)
        F = f + self.BD
        if F in self.bars and F < N:
            tag, pst = self.bars[F]
            def bar(tag=tag, F=F):
                if F in self.prebar: self.prebar[F]()
                e.wait_vm_tag(tag, also_lgkm0=True)
                e.barrier()
            out.append(bar)
            for x in range(F, f + self.LA + 1):
                if x < N: out.append(lambda x=x: self.read(x))
            post = pst
        else:
            nf = f + self.LA
            if nf < N and not any((nf - k) in self.bars for k in range(self.LA - self.BD)):
                out.append(lambda nf=nf: self.read(nf))
        out = out + self.atf.get(f, [])
        return out, post

def wfrag_reads(AW, i, base):
    a = AW[i]
    rg = (base, base + HS)
    return [("ds_read_b64_tr_b16", 0, 2, a, base, rg), ("ds_read_b64_tr_b16", 2, 2, a, base + 1024, rg)]
def kfrag_reads(AK, t, s, base):
    return [("ds_read_b128", 0, 4, AK[s], base + 1024 * t, (VREG_K + base, VREG_K + base + HS))]

def seg_from_stream(st, f0, uses, extra_pinned=None):
    mf = []; pinned = {}
    postq = []
    for f in range(f0, f0 + 8):
        u = uses(f, st.slot(f))
        if Stream.MERGE and f % Stream.MERGE == 0:
            def first(m=u[0], f=f):
                regs = []
                for k in range(Stream.MERGE):
                    if f + k < len(st.frags): regs += R(st.slot(f + k), 4)
                st.e._wait_regs(regs)
                m()
            u = [first] + u[1:]
        for m in u:
            mf.append(m)
            if postq:
                pinned.setdefault(len(mf) - 1, []).append(postq.pop(0))
        a, post = st.after(f)
        pinned.setdefault(len(mf) - 1, []).extend(a)
        postq.extend(post)
    assert not postq
    return mf, pinned

def lane_setup(e, T, sW):
    lane, g, j, t0 = T, T + 1, T + 2, T + 3
    e.valu(f"v_lshrrev_b32 {vr(t0)}, 6, v0", w=[t0], r=[0])
    e.valu(f"v_and_b32 {vr(lane)}, 63, v0", w=[lane], r=[0])
    e.valu(f"v_readfirstlane_b32 {sr(sW)}, {vr(t0)}", r=[t0], kind="readlane", sw=[sW])
    e.valu(f"v_lshrrev_b32 {vr(g)}, 4, {vr(lane)}", w=[g], r=[lane])
    e.valu(f"v_and_b32 {vr(j)}, 15, {vr(lane)}", w=[j], r=[lane])
    return lane, g, j

def w_addr_setup(e, T, g, j, AW, sS):
    rp, cp, f, b0 = T + 3, T + 4, T + 5, T + 6
    e.valu(f"v_lshrrev_b32 {vr(rp)}, 2, {vr(j)}", w=[rp], r=[j])
    e.valu(f"v_and_b32 {vr(cp)}, 3, {vr(j)}", w=[cp], r=[j])
    e.valu(f"v_and_b32 {vr(f)}, 1, {vr(rp)}", w=[f], r=[rp])
    e.valu(f"v_and_b32 {vr(b0)}, 2, {vr(rp)}", w=[b0], r=[rp])
    e.valu(f"v_lshl_or_b32 {vr(f)}, {vr(b0)}, 1, {vr(f)}", w=[f], r=[b0, f])
    e.valu(f"v_and_b32 {vr(b0)}, 1, {vr(g)}", w=[b0], r=[g])
    e.valu(f"v_lshl_or_b32 {vr(f)}, {vr(b0)}, 3, {vr(f)}", w=[f], r=[b0, f])
    e.valu(f"v_xor_b32 {vr(f)}, {vr(f)}, {vr(cp)}", w=[f], r=[f, cp])
    e.valu(f"v_lshlrev_b32 {vr(f)}, 4, {vr(f)}", w=[f], r=[f])
    e.valu(f"v_and_b32 {vr(cp)}, 1, {vr(cp)}", w=[cp], r=[cp])
    e.valu(f"v_lshl_or_b32 {vr(f)}, {vr(cp)}, 3, {vr(f)}", w=[f], r=[cp, f])
    e.valu(f"v_lshl_add_u32 {vr(b0)}, {vr(g)}, 3, {vr(rp)}", w=[b0], r=[g, rp])
    e.valu(f"v_lshl_or_b32 {vr(b0)}, {vr(b0)}, 8, {vr(f)}", w=[b0], r=[b0, f])
    for s in range(4):
        e.valu(f"v_xor_b32 {vr(AW[2*s])}, {sr(sS+s)}, {vr(b0)}", w=[AW[2*s]], r=[b0])
        e.valu(f"v_xor_b32 {vr(AW[2*s+1])}, 8, {vr(AW[2*s])}", w=[AW[2*s+1]], r=[AW[2*s]])

def w_dma_chunk(e, T, g, j, sW, dst):
    f, b0, rho = T + 3, T + 4, T + 5
    e.valu(f"v_and_b32 {vr(f)}, 1, {vr(g)}", w=[f], r=[g])
    e.valu(f"v_and_b32 {vr(b0)}, 2, {vr(g)}", w=[b0], r=[g])
    e.valu(f"v_lshl_or_b32 {vr(f)}, {vr(b0)}, 1, {vr(f)}", w=[f], r=[b0, f])
    e.valu(f"v_mov_b32 {vr(rho)}, {sr(sW)}", w=[rho], sr_=[sW])
    e.valu(f"v_and_b32 {vr(b0)}, 1, {vr(rho)}", w=[b0], r=[rho])
    e.valu(f"v_lshl_or_b32 {vr(f)}, {vr(b0)}, 3, {vr(f)}", w=[f], r=[b0, f])
    e.valu(f"v_xor_b32 {vr(f)}, {vr(f)}, {vr(j)}", w=[f], r=[f, j])
    e.valu(f"v_lshlrev_b32 {vr(dst)}, 4, {vr(f)}", w=[dst], r=[f])
    e.valu(f"v_lshl_add_u32 {vr(rho)}, {vr(rho)}, 3, {vr(g)}", w=[rho], r=[rho, g])
    return rho

def srd(e, d, lo, hi, nbytes):
    e.salu(f"s_mov_b32 {sr(d)}, {sr(lo)}")
    e.salu(f"s_and_b32 {sr(d+1)}, {sr(hi)}, 0xffff")
    e.salu(f"s_mov_b32 {sr(d+2)}, {nbytes}")
    e.salu(f"s_mov_b32 {sr(d+3)}, 0x20000")
def srd_sel(e, d, a, b, nbytes):
    e.salu(f"s_cselect_b32 {sr(d)}, {sr(b)}, {sr(a)}")
    e.salu(f"s_cselect_b32 {sr(d+1)}, {sr(b+1)}, {sr(a+1)}")
    e.salu(f"s_mov_b32 {sr(d+2)}, {nbytes}")
    e.salu(f"s_mov_b32 {sr(d+3)}, 0x20000")

def xlane_reduce(e, op, x, t):
    e.valu(f"v_mov_b32 {vr(t)}, {vr(x)}", w=[t], r=[x])
    e.valu(f"v_permlane16_swap_b32 {vr(x)}, {vr(t)}", w=[x, t], r=[x, t], kind="permlane")
    e.valu(f"{op} {vr(x)}, {vr(x)}, {vr(t)}", w=[x], r=[x, t])
    e.valu(f"v_mov_b32 {vr(t)}, {vr(x)}", w=[t], r=[x])
    e.valu(f"v_permlane32_swap_b32 {vr(x)}, {vr(t)}", w=[x, t], r=[x, t], kind="permlane")
    e.valu(f"{op} {vr(x)}, {vr(x)}, {vr(t)}", w=[x], r=[x, t])

def pack_pair(e, dst, a, b, scale=None):
    pass

def set_exec_odd(e):
    e.salu("s_mov_b32 exec_lo, 0xffff0000")
    e.salu("s_mov_b32 exec_hi, 0xffff0000")
def set_exec_all(e):
    e.salu("s_mov_b64 exec, -1")

WS_STAMP = 128 << 20
class Stamps:
    def __init__(self, e, on, base=78, maxn=12):
        self.e = e; self.on = on; self.base = base; self.n = 0; self.maxn = maxn; self.names = []; self.keep = ()
    def __call__(self, name, real=False):
        if not self.on or self.n >= self.maxn or name not in self.keep: return
        e = self.e
        e.wait_all(vm=False)
        real = name not in ("start", "end")
        e.raw(f"{'s_memrealtime' if real else 's_memtime'} {sr(self.base + 2*self.n, 2)}")
        e.raw("s_waitcnt lgkmcnt(0)")
        self.names.append(name); self.n += 1
    def flush(self, wslo, sW, vt, srdb):
        if not self.on: return
        e = self.e
        srd(e, srdb, wslo, wslo + 1, 0x10000000)
        e.salu(f"s_lshl_b32 s3, s2, 2")
        e.salu(f"s_add_u32 s3, s3, {sr(sW)}")
        e.salu(f"s_lshl_b32 s3, s3, 7")
        e.salu(f"s_add_u32 s3, s3, {WS_STAMP}")
        e.valu(f"v_mov_b32 {vr(vt+1)}, 0", w=[vt+1])
        e.salu("s_mov_b64 exec, 1")
        for i in range(self.n):
            e.valu(f"v_mov_b32 {vr(vt)}, {sr(self.base + 2*i)}", w=[vt])
            e.buf_store(vt, 1, vt + 1, srdb, 3, 4 * i)
            e.wait_all()
        e.salu("s_mov_b64 exec, -1")
        print("stamps:", self.names)

def kernel_wrap(name, body, nv, ns=102):
    return f""".text
.globl {name}
.p2align 8
.type {name},@function
{name}:
{body}
.section .rodata,"a"
.p2align 6
.amdhsa_kernel {name}
  .amdhsa_next_free_vgpr {nv}
  .amdhsa_next_free_sgpr {ns}
  .amdhsa_accum_offset {(nv+3)//4*4}
  .amdhsa_group_segment_fixed_size 0
  .amdhsa_kernarg_size 104
  .amdhsa_user_sgpr_count 2
  .amdhsa_user_sgpr_kernarg_segment_ptr 1
  .amdhsa_system_sgpr_workgroup_id_x 1
.end_amdhsa_kernel
"""

def gemm_phase(e, st, nk, AW, ACC0, ACC1, ACC2, XP, wslot, post_for_bundle, seg_spread, after_first=None, stamp=None):
    assert len(st.frags) == 0
    for ks in range(nk):
        b = ks // 2
        base = (VREG_K if ks % 2 == 0 else VREG_V) + wslot(b) * HS
        for i in range(8):
            f = st.add(wfrag_reads(AW, i, base))
            if i == 0 and ks % 2 == 0 and ks > 0:
                pb = post_for_bundle(b)
                if isinstance(pb, tuple):
                    st.place(f, pb[1], 1, pb[2]); pb = pb[0]
                st.bars[f] = (("W", b), pb)
    e.wait_vm_tag(("W", 0))
    e.barrier()
    if stamp: stamp("w0")
    if after_first: after_first()
    st.start()
    for ks in range(nk):
        if stamp: stamp(f"qk{ks}")
        def uses(f, fr, ks=ks):
            i = f % 8
            first = ks == 0
            u = [lambda: e.mfma(ACC0 + 4*i, fr, XP(ks, 0), None if first else ACC0 + 4*i),
                 lambda: e.mfma(ACC1 + 4*i, fr, XP(ks, 1), None if first else ACC1 + 4*i)]
            if i < 2:
                u.append(lambda: e.mfma(ACC2 + 4*i, fr, XP(ks, 2), None if first else ACC2 + 4*i))
            return u
        mf, pinned = seg_from_stream(st, ks * 8, uses)
        emit_segment(e, mf, pinned, seg_spread(ks))

WS_F1 = 64 << 20
WS_F2 = WS_F1 + 65536
def phase_o(e, opts, stamp, C):
    sW, sW2048, sB, sBr, sHG, sHL, sRT, sOUT, sT0, sT1 = (C[k] for k in "sW sW2048 sB sBr sHG sHL sRT sOUT sT0 sT1".split())
    lane, g, j, T = C["lane"], C["g"], C["j"], C["T"]
    SWO, SXO, SWS, SOUT = 4, 8, 12, 16
    sBB, sWoff, sX, sRot, sWb, sNT, sF, sXo, sCnt, sW4096 = 58 + 0, 26, 29, 67, 27, 32, 28, 64, 65, 66
    sBBr = 63
    OL = opts.get("ol", 0)
    A = Alloc(0, T)
    AC = [A.get(16, 4), A.get(16, 4), A.get(4, 4)]
    FR = A.get(32, 4)
    NXB = opts.get('nxb', 4)
    XB = A.get(NXB * 32, 4)
    XS = A.get(32, 4)
    A4 = [A.get(1) for _ in range(4)]
    A4b = [A.get(1) for _ in range(4)]
    VW = [A.get(1) for _ in range(4)]
    VX = A.get(1); VXSr = A.get(1)
    t3, t4, t5, t6 = T + 3, T + 4, T + 5, T + 6
    NSL = opts.get('onsl', 4); NB = 8
    WSL = 16384; XSB = 65536
    LF = {0: "", 1: " sc1", 2: " sc0 sc1", 3: " nt"}[opts.get("lf", 1)]
    LFX = {0: "", 1: " sc1", 2: " sc0"}[opts.get("lfx", 1)]
    WOF = " nt" if opts.get("wont", 0) else ""
    def wave0_exec(mask):
        e.salu(f"s_cmp_eq_u32 {sr(sW)}, 0")
        e.salu(f"s_cselect_b32 exec_lo, {mask}, 0")
        e.salu(f"s_mov_b32 exec_hi, 0")
    def publish(sOff):
        e.wait_all()
        e.barrier()
        e.valu(f"v_mov_b32 {vr(t5)}, {sr(sRT)}", w=[t5])
        e.valu(f"v_mov_b32 {vr(t6)}, 0", w=[t6])
        wave0_exec(1)
        e.buf_store(t5, 1, t6, SWS, sOff, flags=" sc1")
        set_exec_all(e)
    def poll(sOff, nfl, name):
        e.salu(f"s_cmp_lg_u32 {sr(sW)}, 0")
        e.raw(f"s_cbranch_scc1 {name}_done")
        st0 = e.snapshot()
        e.valu(f"v_lshlrev_b32 {vr(t6)}, 2, {vr(lane)}", w=[t6], r=[lane])
        e.salu(f"s_mov_b32 {sr(sCnt)}, 0")
        e.salu(f"s_mov_b64 exec, {(1 << nfl) - 1}")
        e.label(f"{name}_loop")
        e.raw(f"buffer_load_dword {vr(t5)}, {vr(t6)}, {sr(SWS, 4)}, {sr(sOff)} offen sc1")
        e.raw("s_waitcnt vmcnt(0)")
        e.raw(f"v_cmp_ne_u32 vcc, {sr(sRT)}, {vr(t5)}")
        e.raw(f"s_add_u32 {sr(sCnt)}, {sr(sCnt)}, 1")
        e.raw("s_nop 3")
        e.raw(f"s_cbranch_vccz {name}_ok")
        e.raw(f"s_sleep {opts.get('sleep', 4)}")
        e.raw(f"s_cmp_lt_u32 {sr(sCnt)}, 0x200000")
        e.raw(f"s_cbranch_scc1 {name}_loop")
        e.label(f"{name}_ok")
        set_exec_all(e)
        e.label(f"{name}_done")
        e.restore(st0)
        e.s.t += 1
        e.barrier()
    e.salu(f"s_lshl_b32 {sr(sT0)}, {sr(sBr)}, 3")
    e.salu(f"s_add_u32 {sr(sBBr)}, {sr(sB)}, {sr(sT0)}")
    e.salu(f"s_cmp_eq_u32 {sr(sBr)}, 1")
    srd_sel(e, SWO, 44, 54, 4096 * 512 * 2)
    srd(e, SXO, 56, 57, 2 * 1152 * 4096 * 2)
    srd(e, SWS, 56, 57, 0x10000000)
    srd(e, SOUT, sOUT, sOUT + 1, 8 * 144 * 1024 * 2)
    e.salu(f"s_lshl_b32 {sr(sF)}, {sr(sBBr)}, 2")
    e.salu(f"s_add_u32 {sr(sF)}, {sr(sF)}, {sr(sHG)}")
    e.salu(f"s_lshl_b32 {sr(sF)}, {sr(sF)}, 6")
    e.salu(f"s_add_u32 {sr(sF)}, {sr(sF)}, {WS_F1}")
    e.salu(f"s_lshl_b32 {sr(sT0)}, {sr(sHL)}, 2")
    e.salu(f"s_add_u32 {sr(sT1)}, {sr(sF)}, {sr(sT0)}")
    PRE = opts.get("pre", 0)
    sRdy = 59
    if PRE:
        VFL = A.get(1)
        e.valu(f"v_add_u32 {vr(VFL)}, {sr(sHL)}, {vr(lane)}", w=[VFL], r=[lane])
        e.valu(f"v_and_b32 {vr(VFL)}, 7, {vr(VFL)}", w=[VFL], r=[VFL])
        e.valu(f"v_lshlrev_b32 {vr(VFL)}, 2, {vr(VFL)}", w=[VFL], r=[VFL])
        wave0_exec(0xff)
        e.buf_load(t3, 1, VFL, SWS, sF, flags=" sc1")
        set_exec_all(e)
        e.wait_all()
        e.salu("s_mov_b64 exec, 0xff")
        e.valu(f"v_cmp_eq_u32 vcc, {sr(sRT)}, {vr(t3)}", r=[t3], sw=["vcc"])
        set_exec_all(e)
        e.salu(f"s_mov_b32 {sr(sRdy)}, vcc_lo", sr_=["vcc"])
    publish(sT1)
    if opts.get("prio"): e.raw(f"s_setprio {opts.get('oprio', 0)}")
    stamp("pub1")
    if opts.get("oexp") == "noph": return
    e.salu(f"s_lshl_b32 {sr(sWoff)}, {sr(sHG)}, 20")
    e.salu(f"s_lshl_b32 {sr(sT0)}, {sr(sHL)}, 7")
    e.salu(f"s_add_u32 {sr(sWoff)}, {sr(sWoff)}, {sr(sT0)}")
    e.salu(f"s_lshl_b32 {sr(sW4096)}, {sr(sW)}, 12")
    e.salu(f"s_lshl_b32 {sr(sRot)}, {sr(sB)}, 1")
    if opts.get("orot", 1) == 2: e.salu(f"s_mov_b32 {sr(sRot)}, 0")
    e.salu(f"s_add_u32 {sr(sRot)}, {sr(sRot)}, {sr(sHL)}")
    if opts.get("orot", 1) == 0: e.salu(f"s_mov_b32 {sr(sRot)}, 0")
    e.valu(f"v_lshrrev_b32 {vr(t3)}, 3, {vr(lane)}", w=[t3], r=[lane])
    e.valu(f"v_bfe_u32 {vr(t4)}, {vr(lane)}, 4, 1", w=[t4], r=[lane])
    e.salu(f"s_and_b32 {sr(sT0)}, {sr(sW)}, 1")
    e.salu(f"s_lshl_b32 {sr(sT0)}, {sr(sT0)}, 2")
    e.valu(f"v_or_b32 {vr(t4)}, {sr(sT0)}, {vr(t4)}", w=[t4], r=[t4])
    e.valu(f"v_and_b32 {vr(t5)}, 7, {vr(lane)}", w=[t5], r=[lane])
    e.valu(f"v_xor_b32 {vr(t4)}, {vr(t4)}, {vr(t5)}", w=[t4], r=[t4, t5])
    e.valu(f"v_lshlrev_b32 {vr(t4)}, 4, {vr(t4)}", w=[t4], r=[t4])
    e.valu(f"v_lshl_add_u32 {vr(t4)}, {vr(t3)}, 10, {vr(t4)}", w=[t4], r=[t3, t4])
    e.salu(f"s_lshl_b32 {sr(sT0)}, {sr(sW)}, 13")
    e.valu(f"v_add_u32 {vr(VW[0])}, {sr(sT0)}, {vr(t4)}", w=[VW[0]], r=[t4])
    for k in range(1, 4):
        e.valu(f"v_add_u32 {vr(VW[k])}, {k*(32768-1024)}, {vr(VW[0])}", w=[VW[k]], r=[VW[0]])
    def issue_w(b):
        sl = b % NSL; tg = ("WO", b)
        def c0():
            e.salu(f"s_add_u32 {sr(sT0)}, {sr(sRot)}, {b}")
            e.salu(f"s_and_b32 {sr(sT0)}, {sr(sT0)}, 7")
            e.salu(f"s_lshl_b32 {sr(sWb)}, {sr(sT0)}, 17")
            e.salu(f"s_add_u32 {sr(sWb)}, {sr(sWb)}, {sr(sWoff)}")
            e.salu(f"s_add_u32 m0, {sr(sW4096)}, {sl*WSL}", m0=True)
            for k in range(2):
                e.dma(VW[k], SWO, sWb, 1024 * k, flags=WOF, tag=tg, lds=(sl*WSL + 4096*k, sl*WSL + 4096*k + 4096))
        def c1():
            for k in range(2, 4):
                e.dma(VW[k], SWO, sWb, 1024 * k, flags=WOF, tag=tg, lds=(sl*WSL + 4096*k, sl*WSL + 4096*k + 4096))
        if opts.get("oexp") == "nowo": return []
        return [c0, c1]
    def issue_xs(b):
        sl = b % NSL; tg = ("WO", b)
        def c():
            e.salu(f"s_add_u32 {sr(sT0)}, {sr(sRot)}, {b}")
            e.salu(f"s_and_b32 {sr(sT0)}, {sr(sT0)}, 7")
            e.salu(f"s_mul_i32 {sr(sT0)}, {sr(sT0)}, {36864 if OL else 4096}")
            e.salu(f"s_add_u32 {sr(sT0)}, {sr(sT0)}, {sr(sX+2)}")
            e.salu(f"s_lshr_b32 {sr(sT1)}, {sr(sW2048)}, 1")
            e.salu(f"s_add_u32 m0, {sr(sT1)}, {XSB + sl*4096}", m0=True)
            e.dma(VX, SXO, sT0, 0, flags=LFX, tag=tg, lds=(XSB + sl*4096, XSB + sl*4096 + 4096))
        return [c]
    def XP(ks, t):
        b = ks // 4
        return XB + (b % NXB) * 32 + (ks % 4) * 8 + 4 * t if t < 2 else XS + (b % 2) * 16 + (ks % 4) * 4
    def load_x(b, t):
        if t == 0:
            e.salu(f"s_add_u32 {sr(sXo)}, {sr(sRot)}, {b}")
            e.salu(f"s_and_b32 {sr(sXo)}, {sr(sXo)}, 7")
            e.salu(f"s_mul_i32 {sr(sXo)}, {sr(sXo)}, {36864 if OL else 4096}")
        e.salu(f"s_add_u32 s3, {sr(sXo)}, {sr(sX+t)}")
        if opts.get("oexp") == "nox": return
        for k in range(4):
            e.buf_load(XP(4*b + k, t), 4, VX, SXO, 3, 1024 * k, flags=LFX)
    def read_xs(b):
        sl = b % NSL
        for k in range(4):
            e.ds_read("ds_read_b128", XP(4*b + k, 2), 4, VXSr, sl*4096 + 1024*k, lds=(XSB + sl*4096, XSB + sl*4096 + 4096))
    if opts.get("odelay"):
        e.salu(f"s_cmp_lg_u32 {sr(sW)}, 0")
        e.raw("s_cbranch_scc1 ODL_done")
        e.raw(f"s_lshl_b32 {sr(sT0)}, {sr(sHL)}, 2")
        e.raw(f"s_add_u32 {sr(sT0)}, {sr(sT0)}, {sr(sF)}")
        e.raw(f"s_add_u32 {sr(sT0)}, {sr(sT0)}, {16*64 + (opts['odelay'] - 1) * 32768}")
        e.raw(f"v_mov_b32 {vr(t6)}, 0")
        e.raw("s_mov_b64 exec, 1")
        e.raw(f"s_mov_b32 {sr(sCnt)}, 0")
        e.label("ODL_loop")
        e.raw(f"buffer_load_dword {vr(t5)}, {vr(t6)}, {sr(SWS, 4)}, {sr(sT0)} offen sc1")
        e.raw("s_waitcnt vmcnt(0)")
        e.raw(f"v_cmp_ne_u32 vcc, {sr(sRT)}, {vr(t5)}")
        e.raw(f"s_add_u32 {sr(sCnt)}, {sr(sCnt)}, 1")
        e.raw("s_nop 3")
        e.raw("s_cbranch_vccz ODL_ok")
        e.raw("s_sleep 8")
        e.raw(f"s_cmp_lt_u32 {sr(sCnt)}, 0x100000")
        e.raw("s_cbranch_scc1 ODL_loop")
        e.label("ODL_ok")
        e.raw("s_mov_b64 exec, -1")
        e.label("ODL_done")
        e.barrier()
    for b in range(NSL):
        for c in issue_w(b): c()
    e.salu(f"s_mul_i32 {sr(sT0)}, {sr(sBBr)}, {0 if OL else 9}")
    e.salu(f"s_lshl_b32 {sr(sT1)}, {sr(sW)}, 1")
    e.salu(f"s_add_u32 {sr(sX)}, {sr(sT0)}, {sr(sT1)}")
    e.salu(f"s_add_u32 {sr(sX+1)}, {sr(sX)}, 1")
    e.salu(f"s_add_u32 {sr(sX+2)}, {sr(sT0)}, 8")
    if OL:
        e.salu(f"s_lshl_b32 {sr(sT0)}, {sr(sBBr)}, 2")
        e.salu(f"s_add_u32 {sr(sT0)}, {sr(sT0)}, {sr(sHG)}")
        e.salu(f"s_mul_i32 {sr(sT0)}, {sr(sT0)}, {8*36864}")
    else:
        e.salu(f"s_lshl_b32 {sr(sT0)}, {sr(sHG)}, 15")
    for t in range(3):
        e.salu(f"s_lshl_b32 {sr(sX+t)}, {sr(sX+t)}, {12 if OL else 17}")
        e.salu(f"s_add_u32 {sr(sX+t)}, {sr(sX+t)}, {sr(sT0)}")
    e.salu(f"s_lshr_b32 {sr(sT1)}, {sr(sW2048)}, 1")
    e.salu(f"s_add_u32 {sr(sX+2)}, {sr(sX+2)}, {sr(sT1)}")
    e.valu(f"v_lshlrev_b32 {vr(VX)}, 4, {vr(lane)}", w=[VX], r=[lane])
    e.valu(f"v_add_u32 {vr(VXSr)}, {XSB}, {vr(VX)}", w=[VXSr], r=[VX])
    rp, cp = t3, t4
    e.valu(f"v_lshrrev_b32 {vr(rp)}, 2, {vr(j)}", w=[rp], r=[j])
    e.valu(f"v_and_b32 {vr(cp)}, 3, {vr(j)}", w=[cp], r=[j])
    e.valu(f"v_lshrrev_b32 {vr(t5)}, 1, {vr(rp)}", w=[t5], r=[rp])
    e.valu(f"v_and_b32 {vr(t6)}, 1, {vr(g)}", w=[t6], r=[g])
    e.valu(f"v_lshl_or_b32 {vr(t5)}, {vr(t6)}, 2, {vr(t5)}", w=[t5], r=[t6, t5])
    e.valu(f"v_xor_b32 {vr(t5)}, {vr(t5)}, {vr(cp)}", w=[t5], r=[t5, cp])
    e.valu(f"v_lshlrev_b32 {vr(t5)}, 4, {vr(t5)}", w=[t5], r=[t5])
    e.valu(f"v_and_b32 {vr(cp)}, 1, {vr(cp)}", w=[cp], r=[cp])
    e.valu(f"v_lshl_or_b32 {vr(t5)}, {vr(cp)}, 3, {vr(t5)}", w=[t5], r=[cp, t5])
    e.valu(f"v_lshl_or_b32 {vr(t5)}, {vr(rp)}, 7, {vr(t5)}", w=[t5], r=[rp, t5])
    e.valu(f"v_lshl_or_b32 {vr(t5)}, {vr(g)}, 12, {vr(t5)}", w=[t5], r=[g, t5])
    e.valu(f"v_lshl_or_b32 {vr(t5)}, {vr(t6)}, 9, {vr(t5)}", w=[t5], r=[t6, t5])
    for i in range(4):
        e.salu(f"s_add_u32 {sr(sNT+i)}, {sr(sW)}, {sr(sHG)}")
        e.salu(f"s_add_u32 {sr(sNT+i)}, {sr(sNT+i)}, {i}")
        e.salu(f"s_and_b32 {sr(sNT+i)}, {sr(sNT+i)}, 3")
        e.salu(f"s_lshr_b32 {sr(sT0)}, {sr(sNT+i)}, 1")
        e.salu(f"s_lshl_b32 {sr(sT0)}, {sr(sT0)}, 6")
        e.salu(f"s_and_b32 {sr(sT1)}, {sr(sNT+i)}, 1")
        e.salu(f"s_lshl_b32 {sr(sT1)}, {sr(sT1)}, 3")
        e.salu(f"s_or_b32 {sr(sT0)}, {sr(sT0)}, {sr(sT1)}")
        e.valu(f"v_xor_b32 {vr(A4[i])}, {sr(sT0)}, {vr(t5)}", w=[A4[i]], r=[t5])
        e.valu(f"v_xor_b32 {vr(A4b[i])}, 0x200, {vr(A4[i])}", w=[A4b[i]], r=[A4[i]])
    PROG = opts.get("prog", 1)
    PD = opts.get("pd", 1)
    sRdy, sNeed = 59, 60
    def ensure(ks_, name, sleep=0):
        e.salu(f"s_cmp_lg_u32 {sr(sW)}, 0")
        e.raw(f"s_cbranch_scc1 {name}_done")
        st0 = e.snapshot()
        m = sum(1 << k for k in ks_)
        e.raw(f"s_mov_b32 {sr(sCnt)}, 0")
        e.label(f"{name}_loop")
        e.raw(f"s_and_b32 {sr(sT0)}, {sr(sRdy)}, {m}")
        e.raw(f"s_cmp_eq_u32 {sr(sT0)}, {m}")
        e.raw(f"s_cbranch_scc1 {name}_done")
        e.raw(f"s_mov_b64 exec, 0xff")
        e.raw(f"buffer_load_dword {vr(t5)}, {vr(VFL)}, {sr(SWS, 4)}, {sr(sF)} offen sc1")
        e.raw("s_waitcnt vmcnt(0)")
        e.raw(f"v_cmp_eq_u32 vcc, {sr(sRT)}, {vr(t5)}")
        e.raw(f"s_add_u32 {sr(sCnt)}, {sr(sCnt)}, 1")
        e.raw("s_mov_b64 exec, -1")
        e.raw("s_nop 1")
        e.raw(f"s_mov_b32 {sr(sRdy)}, vcc_lo")
        sleep = sleep or opts.get('esleep', 0)
        if sleep: e.raw(f"s_sleep {sleep}")
        e.raw(f"s_cmp_lt_u32 {sr(sCnt)}, 0x200000")
        e.raw(f"s_cbranch_scc1 {name}_loop")
        e.label(f"{name}_done")
        e.restore(st0)
        e.s.t += 1
    if PROG:
        assert opts.get("orot") == 2
        if PRE:
            assert NXB == 3 and PD == 2
            ensure([1, 2], "ENSP")
            e.barrier()
            for b in range(3):
                for c in issue_xs(b): c()
                for t in range(2): load_x(b, t)
        else:
            assert NXB == 2
            VFL = A.get(1)
            e.valu(f"v_add_u32 {vr(VFL)}, {sr(sHL)}, {vr(lane)}", w=[VFL], r=[lane])
            e.valu(f"v_and_b32 {vr(VFL)}, 7, {vr(VFL)}", w=[VFL], r=[VFL])
            e.valu(f"v_lshlrev_b32 {vr(VFL)}, 2, {vr(VFL)}", w=[VFL], r=[VFL])
            e.salu(f"s_mov_b32 {sr(sRdy)}, 0")
            for c in issue_xs(0): c()
            for t in range(2): load_x(0, t)
    else:
        poll(sF, 8, "POLL1")
        stamp("poll1")
        for b in range(max(NSL, NXB)):
            if b < NSL:
                for c in issue_xs(b): c()
            if b < NXB:
                for t in range(2): load_x(b, t)
    st = Stream(e, FR)
    for ks in range(32):
        b = ks // 4
        base = (b % NSL) * WSL + (ks % 4) * 1024
        rg = ((b % NSL) * WSL, (b % NSL) * WSL + WSL)
        for i in range(4):
            f = st.add([("ds_read_b64_tr_b16", 0, 2, A4[i], base, rg), ("ds_read_b64_tr_b16", 2, 2, A4b[i], base, rg)])
            if i == 0 and ks % 4 == 0 and ks > 0:
                nb = b + NSL - 1
                if PROG:
                    st.bars[f] = (("WO", b), [lambda b=b: read_xs(b)] + (issue_xs(b + PD) if b + PD < NB else []) + (issue_w(nb) if nb < NB else []))
                    if b + PD < NB: st.prebar[f] = lambda b=b: ensure([b + PD], f"ENS{b}")
                else:
                    st.bars[f] = (("WO", b), [lambda b=b: read_xs(b)] + ((issue_w(nb) + issue_xs(nb)) if nb < NB else []))
    stamp("oiss")
    if PROG and not PRE: ensure(list(range(1, PD + 1)), "ENS0")
    e.wait_vm_tag(("WO", 0))
    e.barrier()
    if PROG:
        stamp("poll1")
        if not PRE:
            for c in issue_xs(1) + (issue_xs(2) if PD == 2 else []): c()
            for t in range(2): load_x(1, t)
    stamp("o0")
    read_xs(0)
    st.start()
    for sg in range(16):
        if sg in (2, 4, 8, 12): stamp(f"og{sg}")
        def uses(f, fr):
            ks = f // 4; i = f % 4
            first = ks == 0
            u = [lambda: e.mfma(AC[0] + 4*i, fr, XP(ks, 0), None if first else AC[0] + 4*i),
                 lambda: e.mfma(AC[1] + 4*i, fr, XP(ks, 1), None if first else AC[1] + 4*i)]
            if i == 0:
                u.append(lambda: e.mfma(AC[2], fr, XP(ks, 2), None if first else AC[2]))
            return u
        mf, pinned = seg_from_stream(st, sg * 8, uses)
        spread = []
        if sg % 2 == 0 and sg >= 2 and sg // 2 - 1 + NXB < NB:
            spread = [(lambda t=t, b=sg // 2 - 1 + NXB: load_x(b, t), 1) for t in range(2)]
        emit_segment(e, mf, pinned, spread)
    stamp("ogemm")
    sPb, sPs = sWoff, sWb
    e.salu(f"s_lshl_b32 {sr(sPb)}, {sr(sBBr)}, 3")
    e.salu(f"s_add_u32 {sr(sPb)}, {sr(sPb)}, {sr(sHL)}")
    e.salu(f"s_lshl_b32 {sr(sF)}, {sr(sPb)}, 6")
    e.salu(f"s_add_u32 {sr(sF)}, {sr(sF)}, {WS_F2}")
    e.salu(f"s_mul_i32 {sr(sPb)}, {sr(sPb)}, {16*9*1024}")
    e.salu(f"s_add_u32 {sr(sPb)}, {sr(sPb)}, {WS_P}")
    e.salu(f"s_mul_i32 {sr(sPs)}, {sr(sHG)}, {4*9*1024}")
    e.salu(f"s_add_u32 {sr(sPs)}, {sr(sPs)}, {sr(sPb)}")
    if opts.get("pdelay"):
        e.salu(f"s_lshl_b32 {sr(sF)}, {sr(sBBr)}, 2")
        e.salu(f"s_add_u32 {sr(sF)}, {sr(sF)}, {sr(sHG)}")
        e.salu(f"s_lshl_b32 {sr(sF)}, {sr(sF)}, 6")
        e.salu(f"s_add_u32 {sr(sF)}, {sr(sF)}, {WS_F1 + 16*64}")
        e.salu(f"s_mov_b32 {sr(sRdy)}, 0")
        ensure([0], "PDEL", sleep=opts["pdelay"])
        e.barrier()
    VP = XB
    e.valu(f"v_add_u32 {vr(VP)}, {sr(sW2048)}, {vr(VX)}", w=[VP], r=[VX])
    TAG = opts.get("tag", 1)
    PSF = " sc1 nt" if opts.get("psnt") else " sc1"
    vM, vTg = XB + 2, [XB + 3, XS]
    def tagq(a):
        if not TAG: return
        for r in range(4):
            e.valu(f"v_and_or_b32 {vr(a+r)}, {vr(a+r)}, {vr(vM)}, {vr(vTg[r&1])}", w=[a+r], r=[a+r, vM, vTg[r&1]])
    if TAG:
        e.valu(f"v_mov_b32 {vr(vM)}, 0xfffff000", w=[vM])
        e.salu(f"s_bfe_u32 {sr(sT0)}, {sr(sRT)}, 0xc0001")
        e.salu(f"s_bfe_u32 {sr(sT1)}, {sr(sRT)}, 0xc000d")
        e.valu(f"v_mov_b32 {vr(vTg[0])}, {sr(sT0)}", w=[vTg[0]])
        e.valu(f"v_mov_b32 {vr(vTg[1])}, {sr(sT1)}", w=[vTg[1]])
    for i in (1, 2, 3):
        e.salu(f"s_mul_i32 {sr(sT0)}, {sr(sNT+i)}, {9*1024}")
        e.salu(f"s_add_u32 {sr(sT0)}, {sr(sT0)}, {sr(sPs)}")
        for t in range(2):
            tagq(AC[t] + 4*i)
            e.buf_store(AC[t] + 4*i, 4, VP, SWS, sT0, 1024 * t, flags=PSF)
    e.salu(f"s_mul_i32 {sr(sXo)}, {sr(sNT)}, {9*1024}")
    e.salu(f"s_add_u32 {sr(sT0)}, {sr(sXo)}, {sr(sPs)}")
    e.salu(f"s_add_u32 {sr(sT0)}, {sr(sT0)}, {8*1024}")
    tagq(AC[2])
    e.buf_store(AC[2], 4, VX, SWS, sT0, 0, flags=PSF)
    stamp("pst")
    if not TAG:
        e.salu(f"s_lshl_b32 {sr(sT0)}, {sr(sHG)}, 2")
        e.salu(f"s_add_u32 {sr(sT1)}, {sr(sF)}, {sr(sT0)}")
        publish(sT1)
    stamp("pub2")
    VOo = XB + 1
    e.salu(f"s_and_b32 {sr(sT0)}, {sr(sNT)}, 1")
    e.valu(f"v_and_b32 {vr(t3)}, 1, {vr(g)}", w=[t3], r=[g])
    e.valu(f"v_xor_b32 {vr(t3)}, {sr(sT0)}, {vr(t3)}", w=[t3], r=[t3])
    e.valu(f"v_lshlrev_b32 {vr(t3)}, 3, {vr(t3)}", w=[t3], r=[t3])
    e.valu(f"v_lshl_or_b32 {vr(t3)}, {vr(g)}, 4, {vr(t3)}", w=[t3], r=[g, t3])
    e.valu(f"v_lshl_or_b32 {vr(VOo)}, {vr(j)}, 11, {vr(t3)}", w=[VOo], r=[j, t3])
    sOo = sRot
    e.salu(f"s_mul_i32 {sr(sOo)}, {sr(sB)}, {144*2048}")
    e.salu(f"s_lshl_b32 {sr(sT0)}, {sr(sBr)}, 10")
    e.salu(f"s_add_u32 {sr(sOo)}, {sr(sOo)}, {sr(sT0)}")
    e.salu(f"s_lshl_b32 {sr(sT0)}, {sr(sHL)}, 7")
    e.salu(f"s_add_u32 {sr(sOo)}, {sr(sOo)}, {sr(sT0)}")
    e.salu(f"s_lshr_b32 {sr(sT0)}, {sr(sNT)}, 1")
    e.salu(f"s_lshl_b32 {sr(sT0)}, {sr(sT0)}, 6")
    e.salu(f"s_add_u32 {sr(sOo)}, {sr(sOo)}, {sr(sT0)}")
    if not TAG: poll(sF, 4, "POLL2")
    PB = XB + 4
    if TAG:
        pv = XS + 4
        e.valu(f"v_add_u32 {vr(pv)}, {sr(sHG)}, {vr(lane)}", w=[pv], r=[lane])
        e.valu(f"v_add_u32 {vr(pv)}, 1, {vr(pv)}", w=[pv], r=[pv])
        e.valu(f"v_and_b32 {vr(pv)}, 3, {vr(pv)}", w=[pv], r=[pv])
        e.valu(f"v_add_u32 {vr(pv+1)}, {sr(sW)}, {vr(pv)}", w=[pv+1], r=[pv])
        e.valu(f"v_and_b32 {vr(pv+1)}, 3, {vr(pv+1)}", w=[pv+1], r=[pv+1])
        e.valu(f"v_lshl_add_u32 {vr(pv)}, {vr(pv)}, 2, {vr(pv+1)}", w=[pv], r=[pv, pv+1])
        e.valu(f"v_mul_u32_u24 {vr(pv)}, {9*1024}, {vr(pv)}", w=[pv], r=[pv])
        e.valu(f"v_add_u32 {vr(pv)}, {8*1024 + 1008}, {vr(pv)}", w=[pv], r=[pv])
        e.valu(f"v_and_b32 {vr(AC[2])}, {vr(AC[2])}, {vr(vM)}", w=[AC[2]], r=[AC[2], vM])
        for r in range(1, 4):
            e.valu(f"v_and_b32 {vr(AC[2]+r)}, {vr(AC[2]+r)}, {vr(vM)}", w=[AC[2]+r], r=[AC[2]+r, vM])
        if opts.get("t2skip", 1):
            for d in range(3):
                for r in range(4):
                    e.valu(f"v_mov_b32 {vr(PB + d*12 + 8 + r)}, {vr(vTg[r&1])}", w=[PB + d*12 + 8 + r], r=[vTg[r&1]])
        e.salu(f"s_mov_b32 {sr(sCnt)}, 0")
        e.salu("s_mov_b64 exec, 7")
        e.label("QLOOP")
        e.raw(f"buffer_load_dword {vr(pv+1)}, {vr(pv)}, {sr(SWS, 4)}, {sr(sPb)} offen sc1")
        e.raw("s_waitcnt vmcnt(0)")
        e.raw(f"v_xor_b32 {vr(pv+1)}, {vr(pv+1)}, {vr(vTg[0])}")
        e.raw(f"v_and_b32 {vr(pv+1)}, 0xfff, {vr(pv+1)}")
        e.raw(f"v_cmp_ne_u32 vcc, 0, {vr(pv+1)}")
        e.raw(f"s_add_u32 {sr(sCnt)}, {sr(sCnt)}, 1")
        e.raw("s_nop 3")
        e.raw("s_cbranch_vccz QDONE")
        e.raw(f"s_sleep {opts.get('psleep', 4)}")
        e.raw(f"s_cmp_lt_u32 {sr(sCnt)}, 0x100000")
        e.raw("s_cbranch_scc1 QLOOP")
        e.label("QDONE")
        set_exec_all(e)
        e.wait_all(force=True)
        e.label("PLOOP")
    for d in (1, 2, 3):
        e.salu(f"s_add_u32 {sr(sT0)}, {sr(sHG)}, {d}")
        e.salu(f"s_and_b32 {sr(sT0)}, {sr(sT0)}, 3")
        e.salu(f"s_mul_i32 {sr(sT0)}, {sr(sT0)}, {4*9*1024}")
        e.salu(f"s_add_u32 {sr(sT0)}, {sr(sT0)}, {sr(sPb)}")
        e.salu(f"s_add_u32 {sr(sT0)}, {sr(sT0)}, {sr(sXo)}")
        for t in range(2):
            e.buf_load(PB + (d-1)*12 + 4*t, 4, VP, SWS, sT0, 1024 * t, flags=LF)
        e.salu(f"s_add_u32 {sr(sT0)}, {sr(sT0)}, {8*1024}")
        if opts.get("t2skip", 1):
            e.salu(f"s_cmp_eq_u32 {sr(sW)}, 0")
            e.salu(f"s_cselect_b64 exec, -1, 0")
        e.buf_load(PB + (d-1)*12 + 8, 4, VX, SWS, sT0, 0, flags=LF)
        if opts.get("t2skip", 1): set_exec_all(e)
    if TAG:
        acc = XS + 1; y = XS + 2
        for k in range(18):
            a, b = PB + 2*k, PB + 2*k + 1
            e.valu(f"v_xor_b32 {vr(y)}, {vr(a)}, {vr(vTg[0])}", w=[y], r=[a, vTg[0]])
            e.valu(f"v_xor_b32 {vr(y+1)}, {vr(b)}, {vr(vTg[1])}", w=[y+1], r=[b, vTg[1]])
            if k == 0: e.valu(f"v_or_b32 {vr(acc)}, {vr(y)}, {vr(y+1)}", w=[acc], r=[y, y+1])
            else: e.valu(f"v_or3_b32 {vr(acc)}, {vr(acc)}, {vr(y)}, {vr(y+1)}", w=[acc], r=[acc, y, y+1])
        e.valu(f"v_and_b32 {vr(acc)}, 0xfff, {vr(acc)}", w=[acc], r=[acc])
        e.valu(f"v_cmp_ne_u32 vcc, 0, {vr(acc)}", r=[acc], sw=["vcc"])
        e.salu(f"s_add_u32 {sr(sCnt)}, {sr(sCnt)}, 1")
        e.nop(3)
        e.raw("s_cbranch_vccz PDONE")
        e.salu(f"s_cmp_lt_u32 {sr(sCnt)}, 0x100000")
        e.raw("s_cbranch_scc1 PLOOP")
        e.label("PDONE")
    stamp("poll2")
    for t in range(3):
        for d in range(3):
            for r in range(4):
                a = AC[t] + r; p = PB + d*12 + 4*t + r
                if TAG: e.valu(f"v_and_b32 {vr(p)}, {vr(p)}, {vr(vM)}", w=[p], r=[p, vM])
                e.valu(f"v_add_f32 {vr(a)}, {vr(a)}, {vr(p)}", w=[a], r=[a, p])
        for k in range(2):
            a = AC[t]
            e.valu(f"v_cvt_pk_bf16_f32 {vr(a+k)}, {vr(a+2*k)}, {vr(a+2*k+1)}", w=[a+k], r=[a+2*k, a+2*k+1])
        if t < 2:
            e.salu(f"s_lshl_b32 {sr(sT0)}, {sr(sW)}, 16")
            e.salu(f"s_add_u32 {sr(sT0)}, {sr(sT0)}, {sr(sOo)}")
            if t: e.salu(f"s_add_u32 {sr(sT0)}, {sr(sT0)}, {16*2048}")
            e.buf_store(AC[t], 2, VOo, SOUT, sT0)
        else:
            e.salu(f"s_add_u32 {sr(sT0)}, {sr(sOo)}, {128*2048}")
            e.salu(f"s_cmp_eq_u32 {sr(sW)}, 0")
            e.salu(f"s_cselect_b64 exec, -1, 0")
            e.buf_store(AC[t], 2, VOo, SOUT, sT0)
            set_exec_all(e)

WS_P2 = 40 << 20
def phase_o2(e, opts, stamp, C):
    sW, sW2048, sB, sBr, sHG, sHL, sRT, sOUT, sT0, sT1, sEX, sNQ = (C[k] for k in "sW sW2048 sB sBr sHG sHL sRT sOUT sT0 sT1 sEX sTk".split())
    lane, g, j, T = C["lane"], C["g"], C["j"], C["T"]
    SWO, SXO, SWS, SOUT = 4, 8, 12, 16
    sWoff, sX, sWh, sS, sF, sXh, sCnt, sU = 26, 29, 27, 32, 28, 64, 65, 66
    sBBr, sRdy, sDone, sTile = 63, 59, 67, 40
    A = Alloc(0, T)
    AC = [A.get(32, 4), A.get(32, 4), A.get(8, 4)]
    FR = A.get(32, 4)
    NXP = 8
    XB = A.get(NXP * 8, 4)
    XS2 = A.get(8, 4)
    AWa = [A.get(1) for _ in range(8)]
    AWb = [A.get(1) for _ in range(8)]
    VW0 = A.get(1); VW1 = A.get(1); VX = A.get(1); VFL = A.get(1); VCH = A.get(1); VZ = A.get(1)
    VXT = [A.get(1) for _ in range(3)]
    TT = A.get(8)
    t3, t4, t5, t6 = T + 3, T + 4, T + 5, T + 6
    NSL = 3; NB = 16
    XSH2 = VREG_V + 3 * HS; CH = VREG_V + 4 * HS
    LF = " sc1"
    def XP(ks, t): return XB + ((ks % NXP) * 2 + t) * 4 if t < 2 else XS2 + 4 * (ks & 1)
    e.salu(f"s_lshl_b32 {sr(sT0)}, {sr(sBr)}, 3")
    e.salu(f"s_add_u32 {sr(sBBr)}, {sr(sB)}, {sr(sT0)}")
    e.salu(f"s_cmp_eq_u32 {sr(sBr)}, 1")
    srd_sel(e, SWO, 44, 54, 4096 * 512 * 2)
    srd(e, SXO, 56, 57, 2 * 1152 * 4096 * 2)
    srd(e, SWS, 56, 57, 0x10000000)
    srd(e, SOUT, sOUT, sOUT + 1, 8 * 144 * 1024 * 2)
    e.salu(f"s_lshl_b32 {sr(sF)}, {sr(sBBr)}, 2")
    e.salu(f"s_add_u32 {sr(sF)}, {sr(sF)}, {sr(sHG)}")
    e.salu(f"s_lshl_b32 {sr(sF)}, {sr(sF)}, 6")
    e.salu(f"s_add_u32 {sr(sF)}, {sr(sF)}, {WS_F1}")
    e.salu(f"s_lshl_b32 {sr(sT0)}, {sr(sHL)}, 2")
    e.salu(f"s_add_u32 {sr(sT1)}, {sr(sF)}, {sr(sT0)}")
    rho = w_dma_chunk(e, TT - 3, g, j, sW, VW0)
    e.valu(f"v_lshl_add_u32 {vr(VW0)}, {vr(rho)}, 10, {vr(VW0)}", w=[VW0], r=[rho, VW0])
    e.valu(f"v_add_u32 {vr(VW1)}, {4*1024-1024}, {vr(VW0)}", w=[VW1], r=[VW0])
    e.valu(f"v_lshlrev_b32 {vr(VX)}, 4, {vr(lane)}", w=[VX], r=[lane])
    e.valu(f"v_lshlrev_b32 {vr(VFL)}, 2, {vr(lane)}", w=[VFL], r=[lane])
    e.valu(f"v_mov_b32 {vr(VZ)}, 0", w=[VZ])
    e.salu(f"s_lshl_b32 {sr(sWoff)}, {sr(sHG)}, 20")
    e.salu(f"s_lshl_b32 {sr(sT0)}, {sr(sNQ)}, 8")
    e.salu(f"s_add_u32 {sr(sWoff)}, {sr(sWoff)}, {sr(sT0)}")
    e.salu(f"s_mul_i32 {sr(sT0)}, {sr(sBBr)}, 9")
    e.salu(f"s_lshl_b32 {sr(sX+2)}, {sr(sW)}, 1")
    e.salu(f"s_add_u32 {sr(sX)}, {sr(sT0)}, {sr(sX+2)}")
    e.salu(f"s_add_u32 {sr(sX+1)}, {sr(sX)}, 1")
    e.salu(f"s_add_u32 {sr(sX+2)}, {sr(sT0)}, 8")
    e.salu(f"s_lshl_b32 {sr(sT0)}, {sr(sHG)}, 15")
    for t in range(3):
        e.salu(f"s_lshl_b32 {sr(sX+t)}, {sr(sX+t)}, 17")
        e.salu(f"s_add_u32 {sr(sX+t)}, {sr(sX+t)}, {sr(sT0)}")
    e.salu(f"s_lshr_b32 {sr(sU)}, {sr(sW)}, 1")
    e.salu(f"s_lshl_b32 {sr(sU)}, {sr(sU)}, 10")
    e.salu(f"s_add_u32 {sr(sX+2)}, {sr(sX+2)}, {sr(sU)}")
    for t in range(3):
        e.valu(f"v_add_u32 {vr(VXT[t])}, {sr(sX+t)}, {vr(VX)}", w=[VXT[t]], r=[VX])
    e.wait_all()
    e.barrier()
    e.valu(f"v_mov_b32 {vr(t5)}, {sr(sRT)}", w=[t5])
    e.salu(f"s_cmp_eq_u32 {sr(sW)}, 0")
    e.salu(f"s_cselect_b32 exec_lo, 1, 0")
    e.salu(f"s_mov_b32 exec_hi, 0")
    e.buf_store(t5, 1, VZ, SWS, sT1, flags=" sc1")
    set_exec_all(e)
    if opts.get("prio"): e.raw(f"s_setprio {opts.get('oprio', 0)}")
    stamp("pub1")
    e.salu(f"s_cmp_ge_u32 {sr(sNQ)}, 4")
    e.raw("s_cbranch_scc1 O2_EXIT")
    def set_head(sreg):
        e.salu(f"s_lshl_b32 {sr(sWh)}, {sr(sreg)}, 17", sr_=[sreg])
        e.salu(f"s_add_u32 {sr(sWh)}, {sr(sWh)}, {sr(sWoff)}")
        e.salu(f"s_lshl_b32 {sr(sXh)}, {sr(sreg)}, 12")
    def issue_w(b):
        sl = b % NSL; tg = ("WO", b)
        out = []
        for h in range(2):
            base = (VREG_K if h == 0 else VREG_V) + sl * HS
            def c0(base=base, h=h):
                e.salu(f"s_add_u32 m0, {sr(sW2048)}, {base}", m0=True)
                e.dma(VW0, SWO, sWh, 0, tag=tg, lds=(base, base + 4096))
                e.dma(VW1, SWO, sWh, 1024, tag=tg, lds=(base + 4096, base + 8192))
                e.salu(f"s_add_u32 {sr(sWh)}, {sr(sWh)}, {32*1024}")
            out.append(c0)
        return out
    def issue_xs(b):
        sl = b % NSL; tg = ("WO", b)
        def c():
            e.salu(f"s_add_u32 m0, {sr(sU)}, {XSH2 + 2048*sl - 2048*(b & 1)}", m0=True)
            e.salu(f"s_mov_b64 exec, {sr(sEX, 2)}")
            e.dma(VXT[2], SXO, sXh, 2048 * (b & 1), flags=LF, tag=tg, lds=(XSH2 + 2048*sl, XSH2 + 2048*sl + 2048))
            e.salu("s_mov_b64 exec, -1")
        return [c]
    def xitems(b):
        return [lambda k=k, t=t: e.buf_load(XP(2*b + k, t), 4, VXT[t], SXO, sXh, 2048 * (b & 1) + 1024 * k, flags=LF) for k in range(2) for t in range(2)]
    def read_xs(ks):
        sl = (ks // 2) % NSL
        e.ds_read("ds_read_b128", XP(ks, 2), 4, VX, XSH2 + 2048*sl + 1024*(ks & 1), lds=(XSH2 + 2048*sl, XSH2 + 2048*sl + 2048))
    def choose(i):
        nm = f"CH{i}"
        e.salu(f"s_cmp_lg_u32 {sr(sW)}, 0")
        e.raw(f"s_cbranch_scc1 {nm}_done")
        st0 = e.snapshot()
        e.raw(f"s_mov_b32 {sr(sCnt)}, 0")
        e.label(f"{nm}_loop")
        e.raw(f"s_andn2_b32 {sr(sT0)}, {sr(sRdy)}, {sr(sDone)}")
        e.raw(f"s_cbranch_scc1 {nm}_ok")
        e.raw(f"s_mov_b64 exec, 0xff")
        e.raw(f"buffer_load_dword {vr(t5)}, {vr(VFL)}, {sr(SWS, 4)}, {sr(sF)} offen sc1")
        e.raw("s_waitcnt vmcnt(0)")
        e.raw(f"v_cmp_eq_u32 vcc, {sr(sRT)}, {vr(t5)}")
        e.raw(f"s_add_u32 {sr(sCnt)}, {sr(sCnt)}, 1")
        e.raw("s_mov_b64 exec, -1")
        e.raw("s_nop 1")
        e.raw(f"s_mov_b32 {sr(sRdy)}, vcc_lo")
        e.raw(f"s_andn2_b32 {sr(sT0)}, {sr(sRdy)}, {sr(sDone)}")
        e.raw(f"s_cbranch_scc1 {nm}_ok")
        if opts.get("esleep"): e.raw(f"s_sleep {opts['esleep']}")
        e.raw(f"s_cmp_lt_u32 {sr(sCnt)}, 0x200000")
        e.raw(f"s_cbranch_scc1 {nm}_loop")
        e.raw(f"s_andn2_b32 {sr(sT0)}, 0xff, {sr(sDone)}")
        e.label(f"{nm}_ok")
        e.raw(f"s_ff1_i32_b32 {sr(sT0)}, {sr(sT0)}")
        e.raw(f"s_bitset1_b32 {sr(sDone)}, {sr(sT0)}")
        e.raw(f"v_mov_b32 {vr(t5)}, {sr(sT0)}")
        e.raw(f"ds_write_b32 {vr(VZ)}, {vr(t5)} offset:{CH + 4*(i & 1)}")
        e.raw("s_waitcnt lgkmcnt(0)")
        e.label(f"{nm}_done")
        e.restore(st0); e.s.t += 1
    def get_choice(i):
        def a(): e.ds_read("ds_read_b32", VCH, 1, VZ, CH + 4 * (i & 1))
        def b():
            e.valu(f"v_readfirstlane_b32 {sr(sT1)}, {vr(VCH)}", r=[VCH], kind="readlane", sw=[sT1])
            set_head(sT1)
        return [a, b]
    set_head(sHL)
    for b in range(2):
        for c in issue_w(b) + issue_xs(b) + xitems(b): c()
    e.salu(f"s_mov_b32 {sr(sRdy)}, 0")
    e.salu(f"s_lshl_b32 {sr(sDone)}, 1, {sr(sHL)}")
    for s_ in range(4):
        e.salu(f"s_add_u32 {sr(sS+s_)}, {sr(sW)}, {sr(sHG)}")
        e.salu(f"s_add_u32 {sr(sS+s_)}, {sr(sS+s_)}, {s_}")
        e.salu(f"s_and_b32 {sr(sS+s_)}, {sr(sS+s_)}, 3")
        e.salu(f"s_lshl_b32 {sr(sS+s_)}, {sr(sS+s_)}, 6")
    w_addr_setup(e, TT - 3, g, j, AWa, sS)
    e.valu(f"v_and_b32 {vr(t3)}, 1, {vr(g)}", w=[t3], r=[g])
    e.valu(f"v_lshlrev_b32 {vr(t3)}, 10, {vr(t3)}", w=[t3], r=[t3])
    for i in range(8):
        e.valu(f"v_xor_b32 {vr(AWa[i])}, {vr(AWa[i])}, {vr(t3)}", w=[AWa[i]], r=[AWa[i], t3])
        e.valu(f"v_xor_b32 {vr(AWb[i])}, 0x400, {vr(AWa[i])}", w=[AWb[i]], r=[AWa[i]])
    st = Stream(e, FR)
    for ks in range(32):
        b = ks // 2
        base = (VREG_K if ks % 2 == 0 else VREG_V) + (b % NSL) * HS
        rg = (base, base + HS)
        for i in range(8):
            st.add([("ds_read_b64_tr_b16", 0, 2, AWa[i], base, rg), ("ds_read_b64_tr_b16", 2, 2, AWb[i], base, rg)])
    def after_bar(b):
        items = []
        if b + 2 < NB:
            if b % 2 == 0: items += get_choice(b // 2 + 1)
            items += issue_xs(b + 2) + issue_w(b + 2) + xitems(b + 2)
        return items
    for b in range(1, NB):
        F = 16 * b
        its = after_bar(b)
        st.bars[F] = (("WO", b), [lambda b=b: read_xs(2 * b)] + its[:1])
        for k, c in enumerate(its[1:]):
            st.atf.setdefault(F - st.BD + 2 + k, []).append(c)
        if b % 2 == 0 and b + 2 < NB:
            st.prebar[F] = lambda b=b: choose(b // 2 + 1)
    choose(1)
    e.wait_vm_tag(("WO", 0))
    e.barrier()
    stamp("poll1")
    read_xs(0)
    its0 = after_bar(0)
    its0[0]()
    st.start()
    for k, c in enumerate(its0[1:]):
        st.atf.setdefault(k, []).append(c)
    for ks in range(32):
        def uses(f, fr, ks=ks):
            i = f % 8
            first = ks == 0
            u = [lambda: e.mfma(AC[0] + 4*i, fr, XP(ks, 0), None if first else AC[0] + 4*i),
                 lambda: e.mfma(AC[1] + 4*i, fr, XP(ks, 1), None if first else AC[1] + 4*i)]
            if i < 2:
                u.append(lambda: e.mfma(AC[2] + 4*i, fr, XP(ks, 2), None if first else AC[2] + 4*i))
            return u
        mf, pinned = seg_from_stream(st, ks * 8, uses)
        spread = [(lambda ks=ks: read_xs(ks + 1), 1)] if ks % 2 == 0 else []
        emit_segment(e, mf, pinned, spread)
    stamp("ogemm")
    sPb, sPs, sXo = sWoff, sWh, sXh
    e.salu(f"s_lshl_b32 {sr(sTile)}, {sr(sBr)}, 2")
    e.salu(f"s_add_u32 {sr(sTile)}, {sr(sTile)}, {sr(sB)}")
    e.salu(f"s_sub_u32 {sr(sTile)}, {sr(sTile)}, 4")
    e.salu(f"s_lshl_b32 {sr(sTile)}, {sr(sTile)}, 2")
    e.salu(f"s_add_u32 {sr(sTile)}, {sr(sTile)}, {sr(sNQ)}")
    e.salu(f"s_mul_i32 {sr(sPb)}, {sr(sTile)}, {16*18*1024}")
    e.salu(f"s_add_u32 {sr(sPb)}, {sr(sPb)}, {WS_P2}")
    e.salu(f"s_mul_i32 {sr(sPs)}, {sr(sHG)}, {4*18*1024}")
    e.salu(f"s_add_u32 {sr(sPs)}, {sr(sPs)}, {sr(sPb)}")
    VP, VP2, vM, vTg, VOo, pv, acc, y = AWa[0], AWa[1], AWa[2], [AWa[3], AWa[4]], AWa[5], AWa[6], AWb[0], AWb[1]
    e.salu(f"s_lshl_b32 {sr(sT0)}, {sr(sW)}, 12")
    e.valu(f"v_add_u32 {vr(VP)}, {sr(sT0)}, {vr(VX)}", w=[VP], r=[VX])
    e.valu(f"v_add_u32 {vr(VP2)}, 16384, {vr(VX)}", w=[VP2], r=[VX])
    e.valu(f"v_mov_b32 {vr(vM)}, 0xfffff000", w=[vM])
    e.salu(f"s_bfe_u32 {sr(sT0)}, {sr(sRT)}, 0xc0001")
    e.salu(f"s_bfe_u32 {sr(sT1)}, {sr(sRT)}, 0xc000d")
    e.valu(f"v_mov_b32 {vr(vTg[0])}, {sr(sT0)}", w=[vTg[0]])
    e.valu(f"v_mov_b32 {vr(vTg[1])}, {sr(sT1)}", w=[vTg[1]])
    def tagq(a, d=None):
        d = a if d is None else d
        for r in range(4):
            e.valu(f"v_and_or_b32 {vr(d+r)}, {vr(a+r)}, {vr(vM)}, {vr(vTg[r&1])}", w=[d+r], r=[a+r, vM, vTg[r&1]])
    for s_ in (1, 2, 3):
        e.salu(f"s_mul_i32 {sr(sT0)}, {sr(sS+s_)}, {18*1024//64}")
        e.salu(f"s_add_u32 {sr(sT0)}, {sr(sT0)}, {sr(sPs)}")
        for t in range(2):
            for ee in range(2):
                a = AC[t] + 4 * (2*s_ + ee)
                tagq(a)
                e.buf_store(a, 4, VP, SWS, sT0, 2048 * t + 1024 * ee, flags=" sc1")
    e.salu(f"s_mul_i32 {sr(sXo)}, {sr(sS)}, {18*1024//64}")
    e.salu(f"s_add_u32 {sr(sT0)}, {sr(sXo)}, {sr(sPs)}")
    for ee in range(2):
        tagq(AC[2] + 4*ee, FR + 4*ee)
        e.buf_store(FR + 4*ee, 4, VP2, SWS, sT0, 1024 * ee, flags=" sc1")
    e.valu(f"v_lshlrev_b32 {vr(VOo)}, 11, {vr(j)}", w=[VOo], r=[j])
    e.valu(f"v_lshl_or_b32 {vr(VOo)}, {vr(g)}, 4, {vr(VOo)}", w=[VOo], r=[g, VOo])
    sOo = sDone
    e.salu(f"s_mul_i32 {sr(sOo)}, {sr(sB)}, {144*2048}")
    e.salu(f"s_lshl_b32 {sr(sT0)}, {sr(sBr)}, 10")
    e.salu(f"s_add_u32 {sr(sOo)}, {sr(sOo)}, {sr(sT0)}")
    e.salu(f"s_lshl_b32 {sr(sT0)}, {sr(sNQ)}, 8")
    e.salu(f"s_add_u32 {sr(sOo)}, {sr(sOo)}, {sr(sT0)}")
    e.salu(f"s_add_u32 {sr(sOo)}, {sr(sOo)}, {sr(sS)}")
    e.valu(f"v_add_u32 {vr(pv)}, {sr(sHG)}, {vr(lane)}", w=[pv], r=[lane])
    e.valu(f"v_add_u32 {vr(pv)}, 1, {vr(pv)}", w=[pv], r=[pv])
    e.valu(f"v_and_b32 {vr(pv)}, 3, {vr(pv)}", w=[pv], r=[pv])
    e.valu(f"v_add_u32 {vr(pv+1)}, {sr(sW)}, {vr(pv)}", w=[pv+1], r=[pv])
    e.valu(f"v_and_b32 {vr(pv+1)}, 3, {vr(pv+1)}", w=[pv+1], r=[pv+1])
    e.valu(f"v_lshl_add_u32 {vr(pv)}, {vr(pv)}, 2, {vr(pv+1)}", w=[pv], r=[pv, pv+1])
    e.valu(f"v_mul_u32_u24 {vr(pv)}, {18*1024}, {vr(pv)}", w=[pv], r=[pv])
    e.valu(f"v_add_u32 {vr(pv)}, {17*1024 + 1008}, {vr(pv)}", w=[pv], r=[pv])
    PB = XB
    for d in range(3):
        for r in range(8):
            e.valu(f"v_mov_b32 {vr(PB + d*24 + 16 + r)}, {vr(vTg[r&1])}", w=[PB + d*24 + 16 + r], r=[vTg[r&1]])
    e.salu(f"s_mov_b32 {sr(sCnt)}, 0")
    e.salu("s_mov_b64 exec, 7")
    e.label("Q2LOOP")
    e.raw(f"buffer_load_dword {vr(pv+1)}, {vr(pv)}, {sr(SWS, 4)}, {sr(sPb)} offen sc1")
    e.raw("s_waitcnt vmcnt(0)")
    e.raw(f"v_xor_b32 {vr(pv+1)}, {vr(pv+1)}, {vr(vTg[0])}")
    e.raw(f"v_and_b32 {vr(pv+1)}, 0xfff, {vr(pv+1)}")
    e.raw(f"v_cmp_ne_u32 vcc, 0, {vr(pv+1)}")
    e.raw(f"s_add_u32 {sr(sCnt)}, {sr(sCnt)}, 1")
    e.raw("s_nop 3")
    e.raw("s_cbranch_vccz Q2DONE")
    e.raw(f"s_sleep {opts.get('psleep', 4)}")
    e.raw(f"s_cmp_lt_u32 {sr(sCnt)}, 0x100000")
    e.raw("s_cbranch_scc1 Q2LOOP")
    e.label("Q2DONE")
    set_exec_all(e)
    e.wait_all(force=True)
    e.label("P2LOOP")
    for d in (1, 2, 3):
        e.salu(f"s_add_u32 {sr(sT0)}, {sr(sHG)}, {d}")
        e.salu(f"s_and_b32 {sr(sT0)}, {sr(sT0)}, 3")
        e.salu(f"s_mul_i32 {sr(sT0)}, {sr(sT0)}, {4*18*1024}")
        e.salu(f"s_add_u32 {sr(sT0)}, {sr(sT0)}, {sr(sPb)}")
        e.salu(f"s_add_u32 {sr(sT0)}, {sr(sT0)}, {sr(sXo)}")
        for q in range(4):
            e.buf_load(PB + (d-1)*24 + 4*q, 4, VP, SWS, sT0, 1024 * q, flags=LF)
        e.salu(f"s_cmp_eq_u32 {sr(sW)}, 0")
        e.salu(f"s_cselect_b64 exec, -1, 0")
        for q in range(2):
            e.buf_load(PB + (d-1)*24 + 16 + 4*q, 4, VP2, SWS, sT0, 1024 * q, flags=LF)
        set_exec_all(e)
    for k in range(36):
        a, b = PB + 2*k, PB + 2*k + 1
        e.valu(f"v_xor_b32 {vr(y)}, {vr(a)}, {vr(vTg[0])}", w=[y], r=[a, vTg[0]])
        e.valu(f"v_xor_b32 {vr(y+1)}, {vr(b)}, {vr(vTg[1])}", w=[y+1], r=[b, vTg[1]])
        if k == 0: e.valu(f"v_or_b32 {vr(acc)}, {vr(y)}, {vr(y+1)}", w=[acc], r=[y, y+1])
        else: e.valu(f"v_or3_b32 {vr(acc)}, {vr(acc)}, {vr(y)}, {vr(y+1)}", w=[acc], r=[acc, y, y+1])
    e.valu(f"v_and_b32 {vr(acc)}, 0xfff, {vr(acc)}", w=[acc], r=[acc])
    e.valu(f"v_cmp_ne_u32 vcc, 0, {vr(acc)}", r=[acc], sw=["vcc"])
    e.salu(f"s_add_u32 {sr(sCnt)}, {sr(sCnt)}, 1")
    e.nop(3)
    e.raw("s_cbranch_vccz P2DONE")
    e.salu(f"s_cmp_lt_u32 {sr(sCnt)}, 0x100000")
    e.raw("s_cbranch_scc1 P2LOOP")
    e.label("P2DONE")
    stamp("poll2")
    for t in range(3):
        A0 = AC[t]
        for d in range(3):
            for r in range(8):
                a = A0 + r; p = PB + d*24 + 8*t + r
                e.valu(f"v_and_b32 {vr(p)}, {vr(p)}, {vr(vM)}", w=[p], r=[p, vM])
                e.valu(f"v_add_f32 {vr(a)}, {vr(a)}, {vr(p)}", w=[a], r=[a, p])
        for k in range(4):
            e.valu(f"v_cvt_pk_bf16_f32 {vr(A0+k)}, {vr(A0+2*k)}, {vr(A0+2*k+1)}", w=[A0+k], r=[A0+2*k, A0+2*k+1])
        set_exec_odd(e)
        e.valu(f"v_swap_b32 {vr(A0)}, {vr(A0+2)}", w=[A0, A0+2], r=[A0, A0+2])
        e.valu(f"v_swap_b32 {vr(A0+1)}, {vr(A0+3)}", w=[A0+1, A0+3], r=[A0+1, A0+3])
        if t < 2:
            set_exec_all(e)
            e.salu(f"s_lshl_b32 {sr(sT0)}, {sr(sW)}, 16")
            e.salu(f"s_add_u32 {sr(sT0)}, {sr(sT0)}, {sr(sOo)}")
            if t: e.salu(f"s_add_u32 {sr(sT0)}, {sr(sT0)}, {16*2048}")
            e.buf_store(A0, 4, VOo, SOUT, sT0)
        else:
            e.salu(f"s_add_u32 {sr(sT0)}, {sr(sOo)}, {128*2048}")
            e.salu(f"s_cmp_eq_u32 {sr(sW)}, 0")
            e.salu(f"s_cselect_b64 exec, -1, 0")
            e.buf_store(A0, 4, VOo, SOUT, sT0)
            set_exec_all(e)
    e.label("O2_EXIT")

def phase_o3(e, opts, stamp, C):
    sW, sW2048, sB, sBr, sHG, sHL, sRT, sOUT, sT0, sT1, sEX, sNQ = (C[k] for k in "sW sW2048 sB sBr sHG sHL sRT sOUT sT0 sT1 sEX sTk".split())
    lane, g, j, T = C["lane"], C["g"], C["j"], C["T"]
    SWO, SXO, SWS, SOUT = 4, 8, 12, 16
    sWoff, sX, sWh, sS, sF, sXh, sCnt, sU = 26, 29, 27, 32, 28, 64, 65, 66
    sBBr, sRdy, sDone, sTile = 63, 59, 67, 40
    A = Alloc(0, T)
    AC = [A.get(32, 4), A.get(32, 4), A.get(8, 4)]
    FR = A.get(32, 4)
    NXP = 8
    XB = A.get(NXP * 8, 4)
    XS2 = A.get(8, 4)
    AWa = [A.get(1) for _ in range(8)]
    AWb = [A.get(1) for _ in range(8)]
    VW0 = A.get(1); VW1 = A.get(1); VX = A.get(1); VFL = A.get(1); VCH = A.get(1); VZ = A.get(1)
    VXT = [A.get(1) for _ in range(3)]
    TT = A.get(8)
    t3, t4, t5, t6 = T + 3, T + 4, T + 5, T + 6
    NSL = 3; NB = 8
    sKH = 41
    e.salu(f"s_and_b32 {sr(sNQ)}, {sr(sHL)}, 3")
    e.salu(f"s_lshr_b32 {sr(sKH)}, {sr(sHL)}, 2")
    XSH2 = VREG_V + 3 * HS; CH = VREG_V + 4 * HS
    LF = " sc1"
    def XP(ks, t): return XB + ((ks % NXP) * 2 + t) * 4 if t < 2 else XS2 + 4 * (ks & 1)
    e.salu(f"s_lshl_b32 {sr(sT0)}, {sr(sBr)}, 3")
    e.salu(f"s_add_u32 {sr(sBBr)}, {sr(sB)}, {sr(sT0)}")
    e.salu(f"s_cmp_eq_u32 {sr(sBr)}, 1")
    srd_sel(e, SWO, 44, 54, 4096 * 512 * 2)
    srd(e, SXO, 56, 57, 2 * 1152 * 4096 * 2)
    srd(e, SWS, 56, 57, 0x10000000)
    srd(e, SOUT, sOUT, sOUT + 1, 8 * 144 * 1024 * 2)
    e.salu(f"s_lshl_b32 {sr(sF)}, {sr(sBBr)}, 2")
    e.salu(f"s_add_u32 {sr(sF)}, {sr(sF)}, {sr(sHG)}")
    e.salu(f"s_lshl_b32 {sr(sF)}, {sr(sF)}, 6")
    e.salu(f"s_add_u32 {sr(sF)}, {sr(sF)}, {WS_F1}")
    e.salu(f"s_lshl_b32 {sr(sT0)}, {sr(sHL)}, 2")
    e.salu(f"s_add_u32 {sr(sT1)}, {sr(sF)}, {sr(sT0)}")
    rho = w_dma_chunk(e, TT - 3, g, j, sW, VW0)
    e.valu(f"v_lshl_add_u32 {vr(VW0)}, {vr(rho)}, 10, {vr(VW0)}", w=[VW0], r=[rho, VW0])
    e.valu(f"v_add_u32 {vr(VW1)}, {4*1024-1024}, {vr(VW0)}", w=[VW1], r=[VW0])
    e.valu(f"v_lshlrev_b32 {vr(VX)}, 4, {vr(lane)}", w=[VX], r=[lane])
    e.valu(f"v_lshlrev_b32 {vr(VFL)}, 2, {vr(lane)}", w=[VFL], r=[lane])
    e.valu(f"v_mov_b32 {vr(VZ)}, 0", w=[VZ])
    e.salu(f"s_lshl_b32 {sr(sWoff)}, {sr(sHG)}, 20")
    e.salu(f"s_lshl_b32 {sr(sT0)}, {sr(sNQ)}, 8")
    e.salu(f"s_add_u32 {sr(sWoff)}, {sr(sWoff)}, {sr(sT0)}")
    e.salu(f"s_mul_i32 {sr(sT0)}, {sr(sBBr)}, 9")
    e.salu(f"s_lshl_b32 {sr(sX+2)}, {sr(sW)}, 1")
    e.salu(f"s_add_u32 {sr(sX)}, {sr(sT0)}, {sr(sX+2)}")
    e.salu(f"s_add_u32 {sr(sX+1)}, {sr(sX)}, 1")
    e.salu(f"s_add_u32 {sr(sX+2)}, {sr(sT0)}, 8")
    e.salu(f"s_lshl_b32 {sr(sT0)}, {sr(sHG)}, 15")
    for t in range(3):
        e.salu(f"s_lshl_b32 {sr(sX+t)}, {sr(sX+t)}, 17")
        e.salu(f"s_add_u32 {sr(sX+t)}, {sr(sX+t)}, {sr(sT0)}")
    e.salu(f"s_lshr_b32 {sr(sU)}, {sr(sW)}, 1")
    e.salu(f"s_lshl_b32 {sr(sU)}, {sr(sU)}, 10")
    e.salu(f"s_add_u32 {sr(sX+2)}, {sr(sX+2)}, {sr(sU)}")
    for t in range(3):
        e.valu(f"v_add_u32 {vr(VXT[t])}, {sr(sX+t)}, {vr(VX)}", w=[VXT[t]], r=[VX])
    e.wait_all()
    e.barrier()
    e.valu(f"v_mov_b32 {vr(t5)}, {sr(sRT)}", w=[t5])
    e.salu(f"s_cmp_eq_u32 {sr(sW)}, 0")
    e.salu(f"s_cselect_b32 exec_lo, 1, 0")
    e.salu(f"s_mov_b32 exec_hi, 0")
    e.buf_store(t5, 1, VZ, SWS, sT1, flags=" sc1")
    set_exec_all(e)
    if opts.get("prio"): e.raw(f"s_setprio {opts.get('oprio', 0)}")
    stamp("pub1")
    def set_head(sreg):
        e.salu(f"s_lshl_b32 {sr(sWh)}, {sr(sreg)}, 17", sr_=[sreg])
        e.salu(f"s_add_u32 {sr(sWh)}, {sr(sWh)}, {sr(sWoff)}")
        e.salu(f"s_lshl_b32 {sr(sXh)}, {sr(sreg)}, 12")
    def issue_w(b):
        sl = b % NSL; tg = ("WO", b)
        out = []
        for h in range(2):
            base = (VREG_K if h == 0 else VREG_V) + sl * HS
            def c0(base=base, h=h):
                e.salu(f"s_add_u32 m0, {sr(sW2048)}, {base}", m0=True)
                e.dma(VW0, SWO, sWh, 0, tag=tg, lds=(base, base + 4096))
                e.dma(VW1, SWO, sWh, 1024, tag=tg, lds=(base + 4096, base + 8192))
                e.salu(f"s_add_u32 {sr(sWh)}, {sr(sWh)}, {32*1024}")
            out.append(c0)
        return out
    def issue_xs(b):
        sl = b % NSL; tg = ("WO", b)
        def c():
            e.salu(f"s_add_u32 m0, {sr(sU)}, {XSH2 + 2048*sl - 2048*(b & 1)}", m0=True)
            e.salu(f"s_mov_b64 exec, {sr(sEX, 2)}")
            e.dma(VXT[2], SXO, sXh, 2048 * (b & 1), flags=LF, tag=tg, lds=(XSH2 + 2048*sl, XSH2 + 2048*sl + 2048))
            e.salu("s_mov_b64 exec, -1")
        return [c]
    def xitems(b):
        return [lambda k=k, t=t: e.buf_load(XP(2*b + k, t), 4, VXT[t], SXO, sXh, 2048 * (b & 1) + 1024 * k, flags=LF) for k in range(2) for t in range(2)]
    def read_xs(ks):
        sl = (ks // 2) % NSL
        e.ds_read("ds_read_b128", XP(ks, 2), 4, VX, XSH2 + 2048*sl + 1024*(ks & 1), lds=(XSH2 + 2048*sl, XSH2 + 2048*sl + 2048))
    def choose(i):
        nm = f"CH{i}"
        e.salu(f"s_cmp_lg_u32 {sr(sW)}, 0")
        e.raw(f"s_cbranch_scc1 {nm}_done")
        st0 = e.snapshot()
        e.raw(f"s_mov_b32 {sr(sCnt)}, 0")
        e.label(f"{nm}_loop")
        e.raw(f"s_andn2_b32 {sr(sT0)}, {sr(sRdy)}, {sr(sDone)}")
        e.raw(f"s_cbranch_scc1 {nm}_ok")
        e.raw(f"s_mov_b64 exec, 0xff")
        e.raw(f"buffer_load_dword {vr(t5)}, {vr(VFL)}, {sr(SWS, 4)}, {sr(sF)} offen sc1")
        e.raw("s_waitcnt vmcnt(0)")
        e.raw(f"v_cmp_eq_u32 vcc, {sr(sRT)}, {vr(t5)}")
        e.raw(f"s_add_u32 {sr(sCnt)}, {sr(sCnt)}, 1")
        e.raw("s_mov_b64 exec, -1")
        e.raw("s_nop 1")
        e.raw(f"s_mov_b32 {sr(sRdy)}, vcc_lo")
        e.raw(f"s_andn2_b32 {sr(sT0)}, {sr(sRdy)}, {sr(sDone)}")
        e.raw(f"s_cbranch_scc1 {nm}_ok")
        if opts.get("esleep"): e.raw(f"s_sleep {opts['esleep']}")
        e.raw(f"s_cmp_lt_u32 {sr(sCnt)}, 0x200000")
        e.raw(f"s_cbranch_scc1 {nm}_loop")
        e.raw(f"s_andn2_b32 {sr(sT0)}, 0xff, {sr(sDone)}")
        e.label(f"{nm}_ok")
        e.raw(f"s_ff1_i32_b32 {sr(sT0)}, {sr(sT0)}")
        e.raw(f"s_bitset1_b32 {sr(sDone)}, {sr(sT0)}")
        e.raw(f"v_mov_b32 {vr(t5)}, {sr(sT0)}")
        e.raw(f"ds_write_b32 {vr(VZ)}, {vr(t5)} offset:{CH + 4*(i & 1)}")
        e.raw("s_waitcnt lgkmcnt(0)")
        e.label(f"{nm}_done")
        e.restore(st0); e.s.t += 1
    def get_choice(i):
        def a(): e.ds_read("ds_read_b32", VCH, 1, VZ, CH + 4 * (i & 1))
        def b():
            e.valu(f"v_readfirstlane_b32 {sr(sT1)}, {vr(VCH)}", r=[VCH], kind="readlane", sw=[sT1])
            set_head(sT1)
        return [a, b]
    set_head(sHL)
    for b in range(2):
        for c in issue_w(b) + issue_xs(b) + xitems(b): c()
    e.salu(f"s_mov_b32 {sr(sRdy)}, 0")
    e.salu(f"s_lshl_b32 {sr(sDone)}, 1, {sr(sHL)}")
    e.salu(f"s_lshl_b32 {sr(sT0)}, {sr(sKH)}, 2")
    e.salu(f"s_lshr_b32 {sr(sT0)}, 0xf0, {sr(sT0)}")
    e.salu(f"s_or_b32 {sr(sDone)}, {sr(sDone)}, {sr(sT0)}")
    for s_ in range(4):
        e.salu(f"s_add_u32 {sr(sS+s_)}, {sr(sW)}, {sr(sHG)}")
        e.salu(f"s_add_u32 {sr(sS+s_)}, {sr(sS+s_)}, {s_}")
        e.salu(f"s_and_b32 {sr(sS+s_)}, {sr(sS+s_)}, 3")
        e.salu(f"s_lshl_b32 {sr(sS+s_)}, {sr(sS+s_)}, 6")
    w_addr_setup(e, TT - 3, g, j, AWa, sS)
    e.valu(f"v_and_b32 {vr(t3)}, 1, {vr(g)}", w=[t3], r=[g])
    e.valu(f"v_lshlrev_b32 {vr(t3)}, 10, {vr(t3)}", w=[t3], r=[t3])
    e.salu(f"s_lshl_b32 {sr(sT0)}, {sr(sKH)}, 3")
    e.valu(f"v_or_b32 {vr(t3)}, {sr(sT0)}, {vr(t3)}", w=[t3], r=[t3])
    for i in range(8):
        e.valu(f"v_xor_b32 {vr(AWa[i])}, {vr(AWa[i])}, {vr(t3)}", w=[AWa[i]], r=[AWa[i], t3])
        e.valu(f"v_xor_b32 {vr(AWb[i])}, 0x400, {vr(AWa[i])}", w=[AWb[i]], r=[AWa[i]])
    st = Stream(e, FR)
    for ks in range(16):
        b = ks // 2
        base = (VREG_K if ks % 2 == 0 else VREG_V) + (b % NSL) * HS
        rg = (base, base + HS)
        for i in range(8):
            st.add([("ds_read_b64_tr_b16", 0, 2, AWa[i], base, rg), ("ds_read_b64_tr_b16", 2, 2, AWb[i], base, rg)])
    def after_bar(b):
        items = []
        if b + 2 < NB:
            if b % 2 == 0: items += get_choice(b // 2 + 1)
            items += issue_xs(b + 2) + issue_w(b + 2) + xitems(b + 2)
        return items
    for b in range(1, NB):
        F = 16 * b
        its = after_bar(b)
        st.bars[F] = (("WO", b), [lambda b=b: read_xs(2 * b)] + its[:1])
        for k, c in enumerate(its[1:]):
            st.atf.setdefault(F - st.BD + 2 + k, []).append(c)
        if b % 2 == 0 and b + 2 < NB:
            st.prebar[F] = lambda b=b: choose(b // 2 + 1)
    choose(1)
    e.wait_vm_tag(("WO", 0))
    e.barrier()
    stamp("poll1")
    read_xs(0)
    its0 = after_bar(0)
    its0[0]()
    st.start()
    for k, c in enumerate(its0[1:]):
        st.atf.setdefault(k, []).append(c)
    for ks in range(16):
        def uses(f, fr, ks=ks):
            i = f % 8
            first = ks == 0
            u = [lambda: e.mfma(AC[0] + 4*i, fr, XP(ks, 0), None if first else AC[0] + 4*i),
                 lambda: e.mfma(AC[1] + 4*i, fr, XP(ks, 1), None if first else AC[1] + 4*i)]
            if i < 2:
                u.append(lambda: e.mfma(AC[2] + 4*i, fr, XP(ks, 2), None if first else AC[2] + 4*i))
            return u
        mf, pinned = seg_from_stream(st, ks * 8, uses)
        spread = [(lambda ks=ks: read_xs(ks + 1), 1)] if ks % 2 == 0 else []
        emit_segment(e, mf, pinned, spread)
    stamp("ogemm")
    sPb, sPs, sXo, sS8, sE = sWoff, sWh, sXh, 42, 43
    e.salu(f"s_lshl_b32 {sr(sTile)}, {sr(sBr)}, 2")
    e.salu(f"s_add_u32 {sr(sTile)}, {sr(sTile)}, {sr(sB)}")
    e.salu(f"s_sub_u32 {sr(sTile)}, {sr(sTile)}, 4")
    e.salu(f"s_lshl_b32 {sr(sTile)}, {sr(sTile)}, 2")
    e.salu(f"s_add_u32 {sr(sTile)}, {sr(sTile)}, {sr(sNQ)}")
    e.salu(f"s_mul_i32 {sr(sPb)}, {sr(sTile)}, {64*9*1024}")
    e.salu(f"s_add_u32 {sr(sPb)}, {sr(sPb)}, {WS_P2}")
    e.salu(f"s_lshl_b32 {sr(sS8)}, {sr(sHG)}, 1")
    e.salu(f"s_add_u32 {sr(sS8)}, {sr(sS8)}, {sr(sKH)}")
    e.salu(f"s_mul_i32 {sr(sPs)}, {sr(sS8)}, {8*9*1024}")
    e.salu(f"s_add_u32 {sr(sPs)}, {sr(sPs)}, {sr(sPb)}")
    e.salu(f"s_mul_i32 {sr(sE)}, {sr(sKH)}, 9216")
    VP, VP2, vM, vTg, VOo, pv, acc, y = AWa[0], AWa[1], AWa[2], [AWa[3], AWa[4]], AWa[5], AWa[6], AWb[0], AWb[1]
    e.valu(f"v_add_u32 {vr(VP)}, {sr(sW2048)}, {vr(VX)}", w=[VP], r=[VX])
    e.valu(f"v_add_u32 {vr(VP2)}, 8192, {vr(VX)}", w=[VP2], r=[VX])
    e.valu(f"v_mov_b32 {vr(vM)}, 0xfffff000", w=[vM])
    e.salu(f"s_bfe_u32 {sr(sT0)}, {sr(sRT)}, 0xc0001")
    e.salu(f"s_bfe_u32 {sr(sT1)}, {sr(sRT)}, 0xc000d")
    e.valu(f"v_mov_b32 {vr(vTg[0])}, {sr(sT0)}", w=[vTg[0]])
    e.valu(f"v_mov_b32 {vr(vTg[1])}, {sr(sT1)}", w=[vTg[1]])
    def tagq(a, d=None):
        d = a if d is None else d
        for r in range(4):
            e.valu(f"v_and_or_b32 {vr(d+r)}, {vr(a+r)}, {vr(vM)}, {vr(vTg[r&1])}", w=[d+r], r=[a+r, vM, vTg[r&1]])
    for s_ in (1, 2, 3, 0):
        e.salu(f"s_mul_i32 {sr(sT1)}, {sr(sS+s_)}, {18*1024//64}")
        e.salu(f"s_add_u32 {sr(sT1)}, {sr(sT1)}, {sr(sPs)}")
        for ee in range(2):
            if ee == 0: e.salu(f"s_add_u32 {sr(sT0)}, {sr(sT1)}, {sr(sE)}")
            else:
                e.salu(f"s_sub_u32 {sr(sT0)}, {sr(sT1)}, {sr(sE)}")
                e.salu(f"s_add_u32 {sr(sT0)}, {sr(sT0)}, 9216")
            if not (s_ == 0 and ee == 0):
                for t in range(2):
                    a = AC[t] + 4 * (2*s_ + ee)
                    tagq(a)
                    e.buf_store(a, 4, VP, SWS, sT0, 1024 * t, flags=" sc1")
            if s_ == 0:
                tagq(AC[2] + 4*ee, FR + 4*ee)
                e.buf_store(FR + 4*ee, 4, VP2, SWS, sT0, 0, flags=" sc1")
    e.salu(f"s_mul_i32 {sr(sXo)}, {sr(sS)}, {18*1024//64}")
    e.salu(f"s_add_u32 {sr(sXo)}, {sr(sXo)}, {sr(sE)}")
    e.salu(f"s_add_u32 {sr(sXo)}, {sr(sXo)}, {sr(sPb)}")
    e.valu(f"v_and_b32 {vr(t3)}, 1, {vr(g)}", w=[t3], r=[g])
    e.valu(f"v_xor_b32 {vr(t3)}, {sr(sKH)}, {vr(t3)}", w=[t3], r=[t3])
    e.valu(f"v_lshlrev_b32 {vr(t3)}, 3, {vr(t3)}", w=[t3], r=[t3])
    e.valu(f"v_lshl_or_b32 {vr(t3)}, {vr(g)}, 4, {vr(t3)}", w=[t3], r=[g, t3])
    e.valu(f"v_lshl_or_b32 {vr(VOo)}, {vr(j)}, 11, {vr(t3)}", w=[VOo], r=[j, t3])
    sOo = sDone
    e.salu(f"s_mul_i32 {sr(sOo)}, {sr(sB)}, {144*2048}")
    e.salu(f"s_lshl_b32 {sr(sT0)}, {sr(sBr)}, 10")
    e.salu(f"s_add_u32 {sr(sOo)}, {sr(sOo)}, {sr(sT0)}")
    e.salu(f"s_lshl_b32 {sr(sT0)}, {sr(sNQ)}, 8")
    e.salu(f"s_add_u32 {sr(sOo)}, {sr(sOo)}, {sr(sT0)}")
    e.salu(f"s_add_u32 {sr(sOo)}, {sr(sOo)}, {sr(sS)}")
    e.valu(f"v_add_u32 {vr(pv)}, {sr(sS8)}, {vr(lane)}", w=[pv], r=[lane])
    e.valu(f"v_add_u32 {vr(pv)}, 1, {vr(pv)}", w=[pv], r=[pv])
    e.valu(f"v_and_b32 {vr(pv)}, 7, {vr(pv)}", w=[pv], r=[pv])
    e.valu(f"v_lshrrev_b32 {vr(pv+1)}, 1, {vr(pv)}", w=[pv+1], r=[pv])
    e.valu(f"v_add_u32 {vr(pv+1)}, {sr(sW)}, {vr(pv+1)}", w=[pv+1], r=[pv+1])
    e.valu(f"v_and_b32 {vr(pv+1)}, 3, {vr(pv+1)}", w=[pv+1], r=[pv+1])
    e.valu(f"v_and_b32 {vr(t3)}, 1, {vr(pv)}", w=[t3], r=[pv])
    e.valu(f"v_xor_b32 {vr(t3)}, 1, {vr(t3)}", w=[t3], r=[t3])
    e.valu(f"v_lshl_add_u32 {vr(pv)}, {vr(pv)}, 2, {vr(pv+1)}", w=[pv], r=[pv, pv+1])
    e.valu(f"v_lshl_add_u32 {vr(pv)}, {vr(pv)}, 1, {vr(t3)}", w=[pv], r=[pv, t3])
    e.valu(f"v_mul_u32_u24 {vr(pv)}, {9*1024}, {vr(pv)}", w=[pv], r=[pv])
    e.valu(f"v_add_u32 {vr(pv)}, {8*1024 + 1008}, {vr(pv)}", w=[pv], r=[pv])
    PBs = [XB + 12*k for k in range(6)] + [FR + 8]
    for d in range(7):
        for r in range(4):
            e.valu(f"v_mov_b32 {vr(PBs[d] + 8 + r)}, {vr(vTg[r&1])}", w=[PBs[d] + 8 + r], r=[vTg[r&1]])
    e.salu(f"s_mov_b32 {sr(sCnt)}, 0")
    e.salu("s_mov_b64 exec, 0x7f")
    e.label("Q2LOOP")
    e.raw(f"buffer_load_dword {vr(pv+1)}, {vr(pv)}, {sr(SWS, 4)}, {sr(sPb)} offen sc1")
    e.raw("s_waitcnt vmcnt(0)")
    e.raw(f"v_xor_b32 {vr(pv+1)}, {vr(pv+1)}, {vr(vTg[0])}")
    e.raw(f"v_and_b32 {vr(pv+1)}, 0xfff, {vr(pv+1)}")
    e.raw(f"v_cmp_ne_u32 vcc, 0, {vr(pv+1)}")
    e.raw(f"s_add_u32 {sr(sCnt)}, {sr(sCnt)}, 1")
    e.raw("s_nop 3")
    e.raw("s_cbranch_vccz Q2DONE")
    e.raw(f"s_sleep {opts.get('psleep', 4)}")
    e.raw(f"s_cmp_lt_u32 {sr(sCnt)}, 0x100000")
    e.raw("s_cbranch_scc1 Q2LOOP")
    e.label("Q2DONE")
    set_exec_all(e)
    e.wait_all(force=True)
    e.label("P2LOOP")
    for d in range(1, 8):
        e.salu(f"s_add_u32 {sr(sT0)}, {sr(sS8)}, {d}")
        e.salu(f"s_and_b32 {sr(sT0)}, {sr(sT0)}, 7")
        e.salu(f"s_mul_i32 {sr(sT0)}, {sr(sT0)}, {8*9*1024}")
        e.salu(f"s_add_u32 {sr(sT0)}, {sr(sT0)}, {sr(sXo)}")
        for q in range(2):
            e.buf_load(PBs[d-1] + 4*q, 4, VP, SWS, sT0, 1024 * q, flags=LF)
        e.salu(f"s_cmp_eq_u32 {sr(sW)}, 0")
        e.salu(f"s_cselect_b64 exec, -1, 0")
        e.buf_load(PBs[d-1] + 8, 4, VP2, SWS, sT0, 0, flags=LF)
        set_exec_all(e)
    k = 0
    for d in range(7):
        for q in range(6):
            a, b = PBs[d] + 2*q, PBs[d] + 2*q + 1
            e.valu(f"v_xor_b32 {vr(y)}, {vr(a)}, {vr(vTg[0])}", w=[y], r=[a, vTg[0]])
            e.valu(f"v_xor_b32 {vr(y+1)}, {vr(b)}, {vr(vTg[1])}", w=[y+1], r=[b, vTg[1]])
            if k == 0: e.valu(f"v_or_b32 {vr(acc)}, {vr(y)}, {vr(y+1)}", w=[acc], r=[y, y+1])
            else: e.valu(f"v_or3_b32 {vr(acc)}, {vr(acc)}, {vr(y)}, {vr(y+1)}", w=[acc], r=[acc, y, y+1])
            k += 1
    e.valu(f"v_and_b32 {vr(acc)}, 0xfff, {vr(acc)}", w=[acc], r=[acc])
    e.valu(f"v_cmp_ne_u32 vcc, 0, {vr(acc)}", r=[acc], sw=["vcc"])
    e.salu(f"s_add_u32 {sr(sCnt)}, {sr(sCnt)}, 1")
    e.nop(3)
    e.raw("s_cbranch_vccz P2DONE")
    e.salu(f"s_cmp_lt_u32 {sr(sCnt)}, 0x100000")
    e.raw("s_cbranch_scc1 P2LOOP")
    e.label("P2DONE")
    stamp("poll2")
    for t in range(3):
        A0 = AC[t]
        for d in range(7):
            for r in range(4):
                a = A0 + r; p_ = PBs[d] + 4*t + r
                e.valu(f"v_and_b32 {vr(p_)}, {vr(p_)}, {vr(vM)}", w=[p_], r=[p_, vM])
                e.valu(f"v_add_f32 {vr(a)}, {vr(a)}, {vr(p_)}", w=[a], r=[a, p_])
        for k in range(2):
            e.valu(f"v_cvt_pk_bf16_f32 {vr(A0+k)}, {vr(A0+2*k)}, {vr(A0+2*k+1)}", w=[A0+k], r=[A0+2*k, A0+2*k+1])
        if t < 2:
            e.salu(f"s_lshl_b32 {sr(sT0)}, {sr(sW)}, 16")
            e.salu(f"s_add_u32 {sr(sT0)}, {sr(sT0)}, {sr(sOo)}")
            if t: e.salu(f"s_add_u32 {sr(sT0)}, {sr(sT0)}, {16*2048}")
            e.buf_store(A0, 2, VOo, SOUT, sT0)
        else:
            e.salu(f"s_add_u32 {sr(sT0)}, {sr(sOo)}, {128*2048}")
            e.salu(f"s_cmp_eq_u32 {sr(sW)}, 0")
            e.salu(f"s_cselect_b64 exec, -1, 0")
            e.buf_store(A0, 2, VOo, SOUT, sT0)
            set_exec_all(e)

def gen_k1(opts):
    e = Em()
    SX, SK, SV, SWQ, SO = 4, 8, 12, 16, 20
    sW, sW2048, sKoff, sVoff, sWqoff = 24, 25, 26, 27, 28
    sX = 29
    sS = 32
    sB, sH, sBr, sT0, sT1, sMode, sItem, sOoff, sC = 58, 59, 60, 61, 62, 63, 64, 65, 66
    A = Alloc(0)
    O0 = A.get(32, 4); O1 = A.get(32, 4); O2 = A.get(32, 4)
    QF = [A.get(16, 4) for _ in range(3)]
    NM = [A.get(4, 4) for _ in range(3)]
    S = [[A.get(8, 4) for _ in range(2)] for _ in range(2)]
    S2 = A.get(8, 4)
    FR = A.get(32, 4)
    L = [[A.get(1), A.get(1)] for _ in range(3)]
    AW = [A.get(1) for _ in range(8)]
    AK = [A.get(1) for _ in range(4)]
    VK = A.get(1); VV = A.get(1)
    T = A.get(8)
    nv = A.n
    OA = [O0, O1, O2]
    VWQ0, VWQ1 = L[0][0], L[0][1]
    VXD0, VXD1, VXS = L[1][0], L[1][1], L[2][0]
    AXO = [NM[0], NM[0] + 1]; AXS = [NM[0] + 2, NM[0] + 3]
    XR = [[QF[0], QF[0] + 4, QF[0] + 8], [QF[1], QF[1] + 4, QF[1] + 8]]
    def XP(ks, t): return XR[ks & 1][t]
    sRot, sXk, sEX = 67, 3, 68
    sOUT, sDBG, sRT, sHG, sHL = 72, 74, 70, 76, 77
    FUSED = opts.get('fused', 0)
    XOWN = [VREG_V + 2 * HS, VREG_K + 2 * HS]
    XSH = VREG_V + 4 * HS

    e.salu("s_cmp_ge_u32 s2, 512")
    e.raw("s_cbranch_scc1 K1_END")
    if "onlybr" in opts:
        e.salu("s_bfe_u32 s3, s2, 0x10002")
        e.salu(f"s_cmp_lg_u32 s3, {opts['onlybr']}")
        e.raw("s_cbranch_scc1 K1_END")
    e.raw("s_load_dwordx16 s[36:51], s[0:1], 0")
    e.raw("s_load_dwordx4 s[52:55], s[0:1], 64")
    e.raw("s_load_dwordx2 s[56:57], s[0:1], 96")
    if FUSED:
        e.raw(f"s_load_dwordx4 {sr(sOUT, 4)}, s[0:1], 80")
        e.raw(f"s_memrealtime {sr(sRT, 2)}")
    stamp = Stamps(e, opts.get("stamp", 0))
    keep = {1: "w0 qproj attend epi pub1 poll1 ogemm poll2", 3: "poll1 oiss o0 og2 og4 og8 og12 ogemm",
            4: "attend e1 e2 e3 epi pub1 oiss poll1", 5: "ogemm pst pub2 poll2 pld", 6: "w0 qproj att0 att4 att8 att12 attend epi", 7: "att6 att8 att10 att12 att13 att14 att15 attend", 8: "qproj att0 att1 att2 att3 att4 att5 att6"}
    stamp.keep = keep.get(opts.get("stamp", 0), "").split() + ["start", "rstart", "end", "rend"]
    stamp("start"); stamp("rstart", True)
    lane, g, j = lane_setup(e, T, sW)
    e.salu(f"s_and_b32 {sr(sT0)}, s2, 7")
    e.salu(f"s_lshr_b32 {sr(sT1)}, s2, 3")
    e.salu(f"s_lshr_b32 {sr(sBr)}, {sr(sT0)}, 2")
    e.salu(f"s_and_b32 {sr(sHG)}, {sr(sT0)}, 3")
    if FUSED or opts.get("bmajor"):
        e.salu(f"s_and_b32 {sr(sHL)}, {sr(sT1)}, 7")
        e.salu(f"s_lshr_b32 {sr(sB)}, {sr(sT1)}, 3")
    else:
        e.salu(f"s_and_b32 {sr(sB)}, {sr(sT1)}, 7")
        e.salu(f"s_lshr_b32 {sr(sHL)}, {sr(sT1)}, 3")
    e.salu(f"s_lshl_b32 {sr(sH)}, {sr(sHG)}, 3")
    e.salu(f"s_add_u32 {sr(sH)}, {sr(sH)}, {sr(sHL)}")
    e.salu(f"s_lshl_b32 {sr(sW2048)}, {sr(sW)}, 11", sr_=[sW])
    for s in range(4):
        e.salu(f"s_add_u32 {sr(sS+s)}, {sr(sW)}, {s}")
        e.salu(f"s_and_b32 {sr(sS+s)}, {sr(sS+s)}, 3")
        e.salu(f"s_lshl_b32 {sr(sS+s)}, {sr(sS+s)}, 6")
    e.salu(f"s_lshl_b32 {sr(sItem)}, {sr(sB)}, 5")
    e.salu(f"s_add_u32 {sr(sItem)}, {sr(sItem)}, {sr(sH)}")
    e.salu(f"s_lshl_b32 {sr(sItem)}, {sr(sItem)}, 17")
    e.salu(f"s_lshl_b32 {sr(sWqoff)}, {sr(sH)}, 8")
    e.salu(f"s_mul_i32 {sr(sT0)}, {sr(sB)}, 144")
    e.salu(f"s_lshl_b32 {sr(sT1)}, {sr(sW)}, 5")
    e.salu(f"s_add_u32 {sr(sX)}, {sr(sT0)}, {sr(sT1)}")
    e.salu(f"s_add_u32 {sr(sX+1)}, {sr(sX)}, 16")
    e.salu(f"s_add_u32 {sr(sX+2)}, {sr(sT0)}, 128")
    for t in range(3):
        e.salu(f"s_lshl_b32 {sr(sX+t)}, {sr(sX+t)}, 10")
    e.salu(f"s_mov_b32 {sr(sMode)}, 0")
    e.salu(f"s_mov_b32 {sr(sC)}, {f32(CSCALE):#x}")
    rho = w_dma_chunk(e, T, g, j, sW, VV)
    e.valu(f"v_lshl_add_u32 {vr(VWQ0)}, {vr(rho)}, 13, {vr(VV)}", w=[VWQ0], r=[rho, VV])
    e.valu(f"v_add_u32 {vr(VWQ1)}, {4*8192-1024}, {vr(VWQ0)}", w=[VWQ1], r=[VWQ0])
    e.valu(f"v_lshl_add_u32 {vr(VV)}, {vr(rho)}, 8, {vr(VV)}", w=[VV], r=[rho, VV])
    t3 = T + 3
    e.valu(f"v_mov_b32 {vr(t3)}, {sr(sW)}", w=[t3], sr_=[sW])
    e.valu(f"v_lshl_or_b32 {vr(t3)}, {vr(t3)}, 2, {vr(g)}", w=[t3], r=[t3, g])
    e.valu(f"v_xor_b32 {vr(t3)}, {vr(t3)}, {vr(j)}", w=[t3], r=[t3, j])
    e.valu(f"v_lshlrev_b32 {vr(t3)}, 4, {vr(t3)}", w=[t3], r=[t3])
    e.valu(f"v_lshl_add_u32 {vr(VK)}, {vr(rho)}, 8, {vr(t3)}", w=[VK], r=[rho, t3])
    t4 = T + 4
    e.valu(f"v_and_b32 {vr(t3)}, 7, {vr(lane)}", w=[t3], r=[lane])
    e.valu(f"v_xor_b32 {vr(t3)}, {vr(t3)}, {vr(g)}", w=[t3], r=[t3, g])
    e.valu(f"v_lshlrev_b32 {vr(t3)}, 4, {vr(t3)}", w=[t3], r=[t3])
    e.valu(f"v_lshrrev_b32 {vr(t4)}, 3, {vr(lane)}", w=[t4], r=[lane])
    e.valu(f"v_lshl_add_u32 {vr(VXD0)}, {vr(t4)}, 10, {vr(t3)}", w=[VXD0], r=[t4, t3])
    e.valu(f"v_xor_b32 {vr(VXD1)}, 64, {vr(VXD0)}", w=[VXD1], r=[VXD0])
    e.valu(f"v_add_u32 {vr(VXD1)}, {8192-1024}, {vr(VXD1)}", w=[VXD1], r=[VXD1])
    e.salu(f"s_lshr_b32 {sr(sT0)}, {sr(sW)}, 1")
    e.salu(f"s_mul_i32 {sr(sT1)}, {sr(sT0)}, {8192+64}")
    e.valu(f"v_xor_b32 {vr(VXS)}, {sr(sT1)}, {vr(VXD0)}", w=[VXS], r=[VXD0])
    e.salu(f"s_and_b32 {sr(sT1)}, {sr(sW)}, 1")
    e.salu(f"s_sub_u32 {sr(sEX+1)}, 0, {sr(sT1)}")
    e.salu(f"s_not_b32 {sr(sEX)}, {sr(sEX+1)}")
    e.salu(f"s_add_u32 {sr(sRot)}, {sr(sH)}, {sr(sB)}")
    if opts.get("rot2", 1):
        e.salu(f"s_add_u32 {sr(sRot)}, {sr(sRot)}, {sr(sB)}")
        e.salu(f"s_lshr_b32 {sr(sT0)}, {sr(sB)}, 2")
        e.salu(f"s_add_u32 {sr(sRot)}, {sr(sRot)}, {sr(sT0)}")
    e.salu(f"s_and_b32 {sr(sRot)}, {sr(sRot)}, {7 if opts.get('rot', 1) else 0}")
    e.raw("s_waitcnt lgkmcnt(0)")
    if opts.get("stamp") == 2: stamp("karg")
    e.salu(f"s_cmp_eq_u32 {sr(sBr)}, 1")
    srd_sel(e, SWQ, 42, 52, 512 * 4096 * 2)
    srd_sel(e, SX, 36, 46, 8 * 144 * 512 * 2)
    srd_sel(e, SK, 38, 48, 8 * 32 * 512 * 128 * 2)
    srd_sel(e, SV, 40, 50, 8 * 32 * 512 * 128 * 2)
    L2F = opts.get("l2f", 0)
    sXV, sFast = 36, 37
    if L2F:
        srd(e, SO, sDBG, sDBG + 1, 256)
        e.salu(f"s_or_b32 {sr(sRT)}, {sr(sRT)}, 1")
        e.valu(f"v_mov_b32 {vr(S2)}, {sr(sRT)}", w=[S2])
        e.valu(f"v_mov_b32 {vr(S2+1)}, 0", w=[S2+1])
        e.salu(f"s_or_b32 {sr(sT0)}, s2, {sr(sW)}")
        e.salu(f"s_cmp_eq_u32 {sr(sT0)}, 0")
        e.salu(f"s_cselect_b32 exec_lo, 1, 0")
        e.salu(f"s_mov_b32 exec_hi, 0")
        e.buf_store(S2, 1, S2 + 1, SO, "0", flags=" sc1")
        set_exec_all(e)
    srd(e, SO, 56, 57, 2 * 1152 * 4096 * 2)

    KVF = " nt" if opts.get("nt", 1) else ""
    WF0 = " nt" if opts.get("wnt", 0) else ""
    KF = " nt" if opts.get("knt", opts.get("nt", 1)) else ""
    XF0 = " nt" if opts.get("xnt", 0) else ""
    def issue_w(b):
        sl = b % 2
        out = []
        tg = ("W", b)
        WF = " nt" if b < opts.get("wntf", 0) else WF0
        XF = " nt" if b < opts.get("xntf", 0) else XF0
        for h in range(2):
            base = (VREG_K if h == 0 else VREG_V) + sl * HS
            def c0(base=base, h=h):
                if h == 0:
                    e.salu(f"s_add_u32 {sr(sXk)}, {sr(sRot)}, {b}")
                    e.salu(f"s_and_b32 {sr(sXk)}, {sr(sXk)}, 7")
                    e.salu(f"s_lshl_b32 {sr(sWqoff)}, {sr(sXk)}, 19")
                    e.salu(f"s_lshl_b32 {sr(sXk)}, {sr(sXk)}, 7")
                    e.salu(f"s_lshl_b32 {sr(sT0)}, {sr(sH)}, 8")
                    e.salu(f"s_add_u32 {sr(sWqoff)}, {sr(sWqoff)}, {sr(sT0)}")
                e.salu(f"s_add_u32 m0, {sr(sW2048)}, {base}", m0=True)
                e.dma(VWQ0, SWQ, sWqoff, 0, flags=WF, tag=tg, lds=(base, base + 4096))
                e.dma(VWQ1, SWQ, sWqoff, 1024, flags=WF, tag=tg, lds=(base + 4096, base + 8192))
                if h == 0:
                    e.salu(f"s_add_u32 {sr(sWqoff)}, {sr(sWqoff)}, {32*8192}")
            out.append(c0)
        for t in range(2):
            def cx(t=t):
                e.salu(f"s_lshl_b32 {sr(sT0)}, {sr(sW2048)}, 1")
                e.salu(f"s_add_u32 {sr(sT1)}, {sr(sX+t)}, {sr(sXk)}")
                e.salu(f"s_add_u32 m0, {sr(sT0)}, {XOWN[sl] + 2048*t}", m0=True)
                e.dma(VXD0, SX, sT1, 0, flags=XF, tag=tg, lds=(XOWN[sl] + 8192*t, XOWN[sl] + 8192*t + 4096))
                e.dma(VXD1, SX, sT1, 1024, flags=XF, tag=tg, lds=(XOWN[sl] + 8192*t + 4096, XOWN[sl] + 8192*t + 8192))
            out.append(cx)
        def cs():
            e.salu(f"s_lshr_b32 {sr(sT0)}, {sr(sW)}, 1")
            e.salu(f"s_lshl_b32 {sr(sT0)}, {sr(sT0)}, 10")
            e.salu(f"s_add_u32 {sr(sT1)}, {sr(sX+2)}, {sr(sXk)}")
            e.salu(f"s_add_u32 m0, {sr(sT0)}, {XSH + 2048*sl}", m0=True)
            e.salu(f"s_mov_b64 exec, {sr(sEX, 2)}")
            e.dma(VXS, SX, sT1, 0, flags=XF, tag=tg, lds=(XSH + 2048*sl, XSH + 2048*sl + 2048))
            e.salu("s_mov_b64 exec, -1")
        out.append(cs)
        return out
    def issue_kv(n):
        sl = KVSLOT[n % 5]
        out = []
        if n <= 15:
            def k0():
                e.salu(f"s_add_u32 m0, {sr(sW2048)}, {VREG_K + sl*HS}", m0=True)
                e.dma(VK, SK, sKoff, 0, flags=KF, tag=("KV", n), lds=(VREG_K + sl*HS, VREG_K + sl*HS + 4096))
            def k1():
                e.dma(VK, SK, sKoff, 1024, flags=KF, tag=("KV", n), lds=(VREG_K + sl*HS + 4096, VREG_K + sl*HS + 8192))
                if opts.get("m0opt") and 1 <= n <= 16:
                    e.salu(f"s_add_u32 m0, {sr(sW2048)}, {VREG_V + sl*HS}", m0=True)
                e.salu(f"s_add_u32 {sr(sKoff)}, {sr(sKoff)}, {HS}")
            out += [k0, k1]
        if 1 <= n <= 16:
            def v0():
                if not (opts.get("m0opt") and n <= 15):
                    e.salu(f"s_add_u32 m0, {sr(sW2048)}, {VREG_V + sl*HS}", m0=True)
                e.dma(VV, SV, sVoff, 0, flags=KVF, tag=("KV", n), lds=(VREG_V + sl*HS, VREG_V + sl*HS + 4096))
            def v1():
                e.dma(VV, SV, sVoff, 1024, flags=KVF, tag=("KV", n), lds=(VREG_V + sl*HS + 4096, VREG_V + sl*HS + 8192))
                e.salu(f"s_add_u32 {sr(sVoff)}, {sr(sVoff)}, {HS}")
            out += [v0, v1]
        return out
    NST = opts.get("nst", 0)
    STG = [O2 + 8 + 4*k for k in range(6)] + [NM[1], NM[2]] + [S[a][b] + 4*k for a in range(2) for b in range(2) for k in range(2)]
    STA, STAK = T + 7, L[2][1]
    def stage_load(n):
        for q, (vo, srd_, so) in enumerate(((VK, SK, sKoff), (VV, SV, sVoff))):
            for u in range(2):
                e.buf_load(STG[(n - 1) * 4 + 2*q + u], 4, vo, srd_, so, 1024 * u, flags=KVF)
            e.salu(f"s_add_u32 {sr(so)}, {sr(so)}, {HS}")
    def stage_write(n):
        sl = KVSLOT[n % 5]
        out = []
        for q, reg in enumerate((VREG_K, VREG_V)):
            for u in range(2):
                d = STG[(n - 1) * 4 + 2*q + u]
                out.append(lambda d=d, reg=reg, u=u: e.ds_write("ds_write_b128", STA if reg == VREG_V else STAK, d, 4, sl*HS + 1024*u,
                           lds=(reg + sl*HS + 4096*u, reg + sl*HS + 4096*u + 4096)))
        return out
    QST = opts.get("qst", 0)
    QS = STG + [QF[2] + 4*k for k in range(4)]
    AXW, AXX, AXS_ = T + 7, L[2][1], QF[0] + 12
    def q_load(b):
        R_ = QS[9 * (b & 1): 9 * (b & 1) + 9]
        def c0():
            e.salu(f"s_add_u32 {sr(sXk)}, {sr(sRot)}, {b}")
            e.salu(f"s_and_b32 {sr(sXk)}, {sr(sXk)}, 7")
            e.salu(f"s_lshl_b32 {sr(sWqoff)}, {sr(sXk)}, 19")
            e.salu(f"s_lshl_b32 {sr(sXk)}, {sr(sXk)}, 7")
            e.salu(f"s_lshl_b32 {sr(sT0)}, {sr(sH)}, 8")
            e.salu(f"s_add_u32 {sr(sWqoff)}, {sr(sWqoff)}, {sr(sT0)}")
            e.buf_load(R_[0], 4, VWQ0, SWQ, sWqoff, 0)
            e.buf_load(R_[1], 4, VWQ1, SWQ, sWqoff, 1024)
            e.salu(f"s_add_u32 {sr(sWqoff)}, {sr(sWqoff)}, {32*8192}")
        def c1():
            e.buf_load(R_[2], 4, VWQ0, SWQ, sWqoff, 0)
            e.buf_load(R_[3], 4, VWQ1, SWQ, sWqoff, 1024)
        def cx(t):
            e.salu(f"s_add_u32 {sr(sT1)}, {sr(sX+t)}, {sr(sXk)}")
            e.buf_load(R_[4 + 2*t], 4, VXD0, SX, sT1, 0)
            e.buf_load(R_[5 + 2*t], 4, VXD1, SX, sT1, 1024)
        def cs():
            e.salu(f"s_add_u32 {sr(sT1)}, {sr(sX+2)}, {sr(sXk)}")
            e.salu(f"s_mov_b64 exec, {sr(sEX, 2)}")
            e.buf_load(R_[8], 4, VXS, SX, sT1, 0)
            e.salu("s_mov_b64 exec, -1")
        return [c0, c1, lambda: cx(0), lambda: cx(1), cs]
    def q_write(b):
        R_ = QS[9 * (b & 1): 9 * (b & 1) + 9]
        sl = b % 2
        out = []
        for h in range(2):
            base = (VREG_K if h == 0 else VREG_V) + sl * HS
            for u in range(2):
                out.append(lambda h=h, u=u, base=base: e.ds_write("ds_write_b128", AXW, R_[2*h + u], 4, base + 1024*u, lds=(base + 4096*u, base + 4096*u + 4096)))
        for t in range(2):
            for u in range(2):
                out.append(lambda t=t, u=u: e.ds_write("ds_write_b128", AXX, R_[4 + 2*t + u], 4, XOWN[sl] + 2048*t + 1024*u,
                                                       lds=(XOWN[sl] + 8192*t + 4096*u, XOWN[sl] + 8192*t + 4096*u + 4096)))
        def cs():
            e.salu(f"s_mov_b64 exec, {sr(sEX, 2)}")
            e.ds_write("ds_write_b128", AXS_, R_[8], 4, XSH + 2048*sl, lds=(XSH + 2048*sl, XSH + 2048*sl + 2048))
            e.salu("s_mov_b64 exec, -1")
        out.append(cs)
        return out
    def do_warm(SRD, va, vd):
        e.salu(f"s_cmp_eq_u32 {sr(sBr)}, 1")
        srd_sel(e, SRD, 44, 54, 4096 * 512 * 2)
        e.salu(f"s_lshl_b32 {sr(sT0)}, {sr(sHG)}, 20")
        e.salu(f"s_lshl_b32 {sr(sT1)}, {sr(sHL)}, 7")
        e.salu(f"s_add_u32 {sr(sT0)}, {sr(sT0)}, {sr(sT1)}")
        e.salu(f"s_lshl_b32 {sr(sT1)}, {sr(sB)}, 17")
        e.salu(f"s_add_u32 {sr(sT0)}, {sr(sT0)}, {sr(sT1)}")
        e.salu(f"s_lshl_b32 {sr(sT1)}, {sr(sW)}, 15")
        e.salu(f"s_add_u32 {sr(sT0)}, {sr(sT0)}, {sr(sT1)}")
        e.valu(f"v_lshrrev_b32 {vr(va)}, 3, {vr(lane)}", w=[va], r=[lane])
        e.valu(f"v_lshlrev_b32 {vr(va)}, 10, {vr(va)}", w=[va], r=[va])
        e.valu(f"v_and_b32 {vr(vd)}, 7, {vr(lane)}", w=[vd], r=[lane])
        e.valu(f"v_lshl_add_u32 {vr(va)}, {vr(vd)}, 4, {vr(va)}", w=[va], r=[va, vd])
        for k in range(4):
            e.raw(f"buffer_load_dwordx4 {vr(vd, 4)}, {vr(va)}, {sr(SRD, 4)}, {sr(sT0)} offen{' nt' if opts.get('warmnt') else ''}")
            e.s.vm.append((None, frozenset(R(vd, 4))))
            e.salu(f"s_add_u32 {sr(sT0)}, {sr(sT0)}, 8192")
    def read_x(ks, t):
        sl = (ks // 2) % 2
        if t < 2: e.ds_read("ds_read_b128", XP(ks, t), 4, AXO[ks & 1], XOWN[sl] + 2048 * t, lds=(XOWN[sl], XOWN[sl] + 16384))
        else: e.ds_read("ds_read_b128", XP(ks, t), 4, AXS[ks & 1], XSH + 2048 * sl, lds=(XSH + 2048*sl, XSH + 2048*sl + 2048))
    if opts.get("exp_now"):
        issue_w = lambda b: []
    EXP = str(opts.get("exp", "")).split(",")
    if opts.get("exp_nokv"):
        issue_kv = lambda n: []
        e.salu(f"s_mov_b32 {sr(sMode)}, 1")
    e.salu(f"s_mov_b32 {sr(sKoff)}, {sr(sItem)}")
    e.salu(f"s_mov_b32 {sr(sVoff)}, {sr(sItem)}")
    if opts.get("stamp") == 2:
        for k, c in enumerate(issue_w(0) + issue_w(1)):
            c()
            if k in (0, 1, 2, 4, 6): stamp(f"iss{k}")
    else:
        def early():
            for c in issue_kv(0): c()
            for n_ in range(1, NST + 1): stage_load(n_)
        if NST and opts.get("stpos", 0) == 0: early()
        for c in issue_w(0): c()
        if NST and opts.get("stpos", 0) == 1: early()
        if not opts.get("qlate"):
            for c in issue_w(1): c()
        if NST and opts.get("stpos", 0) == 2: early()
        if opts.get("warmstep") == -1:
            do_warm(SO, S2, S2 + 4)
            srd(e, SO, 56, 57, 2 * 1152 * 4096 * 2)
    if QST:
        assert NST == 0
        for c in q_load(2) + q_load(3): c()
        e.valu(f"v_lshlrev_b32 {vr(AXS_)}, 4, {vr(lane)}", w=[AXS_], r=[lane])
        e.valu(f"v_add_u32 {vr(AXW)}, {sr(sW2048)}, {vr(AXS_)}", w=[AXW], r=[AXS_])
        e.valu(f"v_add_u32 {vr(AXX)}, {sr(sW2048)}, {vr(AXW)}", w=[AXX], r=[AXW])
        e.salu(f"s_lshr_b32 {sr(sT0)}, {sr(sW)}, 1")
        e.salu(f"s_lshl_b32 {sr(sT0)}, {sr(sT0)}, 10")
        e.valu(f"v_add_u32 {vr(AXS_)}, {sr(sT0)}, {vr(AXS_)}", w=[AXS_], r=[AXS_])
    if NST:
        e.valu(f"v_lshlrev_b32 {vr(STA)}, 4, {vr(lane)}", w=[STA], r=[lane])
        e.valu(f"v_add_u32 {vr(STA)}, {sr(sW2048)}, {vr(STA)}", w=[STA], r=[STA])
        e.valu(f"v_add_u32 {vr(STAK)}, {VREG_K}, {vr(STA)}", w=[STAK], r=[STA])
    e.valu(f"v_lshrrev_b32 {vr(t3)}, 1, {vr(j)}", w=[t3], r=[j])
    e.valu(f"v_xor_b32 {vr(t3)}, {vr(t3)}, {vr(g)}", w=[t3], r=[t3, g])
    e.valu(f"v_lshlrev_b32 {vr(t3)}, 4, {vr(t3)}", w=[t3], r=[t3])
    e.valu(f"v_lshl_add_u32 {vr(AXS[0])}, {vr(j)}, 7, {vr(t3)}", w=[AXS[0]], r=[j, t3])
    e.valu(f"v_xor_b32 {vr(AXS[1])}, 64, {vr(AXS[0])}", w=[AXS[1]], r=[AXS[0]])
    e.salu(f"s_lshl_b32 {sr(sT0)}, {sr(sW)}, 12")
    for k in range(2):
        e.valu(f"v_add_u32 {vr(AXO[k])}, {sr(sT0)}, {vr(AXS[k])}", w=[AXO[k]], r=[AXS[k]])
    w_addr_setup(e, T, g, j, AW, sS)
    t3, t4 = T + 3, T + 4
    e.valu(f"v_lshrrev_b32 {vr(t3)}, 2, {vr(j)}", w=[t3], r=[j])
    e.valu(f"v_and_b32 {vr(t4)}, 3, {vr(j)}", w=[t4], r=[j])
    e.valu(f"v_lshl_add_u32 {vr(t3)}, {vr(t3)}, 3, {vr(t4)}", w=[t3], r=[t3, t4])
    e.valu(f"v_xor_b32 {vr(t4)}, {vr(g)}, {vr(j)}", w=[t4], r=[g, j])
    e.valu(f"v_lshlrev_b32 {vr(t4)}, 4, {vr(t4)}", w=[t4], r=[t4])
    e.valu(f"v_lshl_add_u32 {vr(t3)}, {vr(t3)}, 8, {vr(t4)}", w=[t3], r=[t3, t4])
    for s in range(4):
        e.valu(f"v_xor_b32 {vr(AK[s])}, {sr(sS+s)}, {vr(t3)}", w=[AK[s]], r=[t3])
        e.valu(f"v_add_u32 {vr(AK[s])}, {VREG_K}, {vr(AK[s])}", w=[AK[s]], r=[AK[s]])

    st = Stream(e, FR)
    def post_w(b):
        out = [lambda: [read_x(2 * b, t) for t in range(3)]]
        if QST:
            items = (q_write(b + 1) if b + 1 <= 7 else [])
            if b == 6: items += issue_kv(0)
            if b == 7: items += issue_kv(1)
            later = q_load(b + 3) if b + 3 <= 7 else []
            if b == 7: return out + items
            return (out, items + [lambda: e.wait_all(vm=False)] * (1 if later else 0) + later, 1)
        if b + 1 <= 7 and b + 1 > opts.get("qlate", 0): out += issue_w(b + 1)
        if NST == 0:
            if b == 6: out += issue_kv(0)
            if b == 7: out += issue_kv(1)
        elif b == 7: out += stage_write(1)
        if opts.get("qsp", 0) and b < 7: return (out[:1], out[1:], opts["qsp"])
        return out
    for b_ in range(1, opts.get("qlate", 0) + 1):
        if opts.get("qlpos", 0) == 0:
            st.prebar[16 * b_] = lambda b_=b_: [c() for c in issue_w(b_)]
        else:
            for k, c in enumerate(issue_w(b_)):
                st.atf.setdefault(16 * b_ - st.BD - opts["qlpos"] + 0 * k, []).append(c)
    def qspread(ks):
        if ks % 2 == 0:
            return [(lambda t=t: read_x(ks + 1, t), 1) for t in range(3)]
        return []
    stamp("issued")
    if opts.get("qprio"): e.raw(f"s_setprio {opts['qprio']}")
    if opts.get("q16"):
        assert NST == 0 and not QST
        XR3 = [[QF[q], QF[q] + 4, QF[q] + 8] for q in range(3)]
        def XP3(ks, t): return XR3[ks % 3][t]
        def rx(ks, t):
            sl = (ks // 2) % 2
            if t < 2: e.ds_read("ds_read_b128", XP3(ks, t), 4, AXO[ks & 1], XOWN[sl] + 2048 * t, lds=(XOWN[sl], XOWN[sl] + 16384))
            else: e.ds_read("ds_read_b128", XP3(ks, t), 4, AXS[ks & 1], XSH + 2048 * sl, lds=(XSH + 2048*sl, XSH + 2048*sl + 2048))
        sWq2 = 39
        def w_tile(ks):
            b = ks // 2
            base = (VREG_K if ks % 2 == 0 else VREG_V) + (b % 2) * HS
            def c():
                e.salu(f"s_add_u32 {sr(sWq2)}, {sr(sRot)}, {b}")
                e.salu(f"s_and_b32 {sr(sWq2)}, {sr(sWq2)}, 7")
                e.salu(f"s_lshl_b32 {sr(sWq2)}, {sr(sWq2)}, 19")
                e.salu(f"s_lshl_b32 {sr(sT0)}, {sr(sH)}, 8")
                e.salu(f"s_add_u32 {sr(sWq2)}, {sr(sWq2)}, {sr(sT0)}")
                if ks & 1: e.salu(f"s_add_u32 {sr(sWq2)}, {sr(sWq2)}, {32*8192}")
                e.salu(f"s_add_u32 m0, {sr(sW2048)}, {base}", m0=True)
                e.dma(VWQ0, SWQ, sWq2, 0, tag=("Q", ks), lds=(base, base + 4096))
                e.dma(VWQ1, SWQ, sWq2, 1024, tag=("Q", ks), lds=(base + 4096, base + 8192))
            return [c]
        def x_bundle(b):
            its = issue_w(b)[2:]
            def pre():
                e.salu(f"s_add_u32 {sr(sXk)}, {sr(sRot)}, {b}")
                e.salu(f"s_and_b32 {sr(sXk)}, {sr(sXk)}, 7")
                e.salu(f"s_lshl_b32 {sr(sXk)}, {sr(sXk)}, 7")
            return [lambda: (pre(), its[0]())] + its[1:]
        for ks in range(16):
            base = (VREG_K if ks % 2 == 0 else VREG_V) + ((ks // 2) % 2) * HS
            for i in range(8):
                f = st.add(wfrag_reads(AW, i, base))
        for ks in range(1, 16):
            post = []
            if ks % 2 == 0: post.append(lambda ks=ks: [rx(k, t) for k in (ks, ks + 1) for t in range(3)])
            if ks % 2 == 1 and (ks + 3) // 2 <= 7: post += x_bundle((ks + 3) // 2)
            if ks + 3 <= 15: post += w_tile(ks + 3)
            if ks == 13: post += issue_kv(0)
            if ks == 14: post += issue_kv(1)
            tag = ("Q", ks) if ks >= 4 else ("W", ks // 2)
            st.bars[8 * ks] = (tag, post)
            if ks >= 4 and ks % 2 == 0:
                st.prebar[8 * ks] = lambda ks=ks: e.wait_vm_tag(("W", ks // 2))
        e.wait_vm_tag(("W", 0))
        e.barrier()
        stamp("w0")
        for k in (0, 1):
            for t in range(3): rx(k, t)
        st.start()
        for ks in range(16):
            def uses(f, fr, ks=ks):
                i = f % 8
                first = ks == 0
                u = [lambda: e.mfma(O0 + 4*i, fr, XP3(ks, 0), None if first else O0 + 4*i),
                     lambda: e.mfma(O1 + 4*i, fr, XP3(ks, 1), None if first else O1 + 4*i)]
                if i < 2:
                    u.append(lambda: e.mfma(O2 + 4*i, fr, XP3(ks, 2), None if first else O2 + 4*i))
                return u
            mf, pinned = seg_from_stream(st, ks * 8, uses)
            emit_segment(e, mf, pinned, [])
        KV1_REST = []
    else:
        KV1_REST = []
        gemm_phase(e, st, 16, AW, O0, O1, O2, XP, lambda b: b % 2, post_w, qspread,
                   after_first=lambda: [read_x(0, t) for t in range(3)], stamp=stamp)
    stamp("qproj")
    def pack_scaled(dst, a, scale_txt, scale_r=(), scale_s=()):
        for half in range(2):
            for r in range(4):
                x = a + 4*half + r
                e.valu(f"v_mul_f32 {vr(x)}, {scale_txt}, {vr(x)}", w=[x], r=[x] + list(scale_r), sr_=scale_s)
        for k in range(4):
            e.valu(f"v_cvt_pk_bf16_f32 {vr(dst+k)}, {vr(a+2*k)}, {vr(a+2*k+1)}", w=[dst+k], r=[a+2*k, a+2*k+1])
    QX = S2
    XA = XSH + 4096
    def swap4(lst):
        set_exec_odd(e)
        for b4 in lst:
            e.valu(f"v_swap_b32 {vr(b4)}, {vr(b4+2)}", w=[b4, b4+2], r=[b4, b4+2])
            e.valu(f"v_swap_b32 {vr(b4+1)}, {vr(b4+3)}", w=[b4+1, b4+3], r=[b4+1, b4+3])
        set_exec_all(e)
    EARLYB = opts.get("earlyb", 1) and NST == 0
    pack_scaled(QX, O2, sr(sC))
    swap4([QX])
    e.valu(f"v_lshlrev_b32 {vr(t3)}, 4, {vr(lane)}", w=[t3], r=[lane])
    e.salu(f"s_lshl_b32 {sr(sT0)}, {sr(sW)}, 10")
    e.valu(f"v_add_u32 {vr(t4)}, {sr(sT0)}, {vr(t3)}", w=[t4], r=[t3])
    e.ds_write("ds_write_b128", t4, QX, 4, XA, lds=(XA, XA + 4096))
    def own_tiles():
        for t in range(2):
            for s in range(4):
                pack_scaled(QF[t] + 4*s, OA[t] + 8*s, sr(sC))
        swap4([QF[t] + 4*s for t in range(2) for s in range(4)])
    if EARLYB:
        e.wait_all(vm=False)
        e.barrier()
        for c in KV1_REST: c()
        for n_ in range(2, opts.get("kvd0", opts.get("kvd", 4)) + 1):
            for c in issue_kv(n_): c()
        own_tiles()
        e.wait_vm_tag(("KV", 0))
        e.barrier()
    else:
        own_tiles()
        e.wait_vm_tag(("KV", 0), also_lgkm0=True)
        e.barrier()
    for s in range(4):
        e.salu(f"s_lshl_b32 {sr(sT0)}, {sr(sS+s)}, 4")
        e.valu(f"v_add_u32 {vr(t4)}, {sr(sT0)}, {vr(t3)}", w=[t4], r=[t3])
        e.ds_read("ds_read_b128", QF[2] + 4*s, 4, t4, XA, lds=(XA, XA + 4096))
    if opts.get("dumpq"):
        pass
    for n_ in range(2, NST + 1):
        for c in stage_write(n_): c()
    e.label("ATT_ENTRY")
    if opts.get("prio"): e.raw(f"s_setprio {opts['prio']}")
    entry_state = e.snapshot()
    KD = opts.get("kvd", 4)
    FIRSTD = max(2, NST + 1)
    if EARLYB: FIRSTD = opts.get("kvd0", KD) + 1
    KD0 = opts.get("kvd0", KD)
    for n_ in range(FIRSTD, KD0 + 1):
        for c in issue_kv(n_): c()
    nxt = max(FIRSTD, KD0 + 1)
    st = Stream(e, FR)
    for n in range(17):
        sl = KVSLOT[n % 5]
        first = len(st.frags)
        if n <= 15:
            for t in range(2):
                for s in range(4):
                    st.add(kfrag_reads(AK, t, s, sl * HS))
        if n >= 1:
            for i in range(8):
                st.add(wfrag_reads(AW, i, VREG_V + sl * HS))
        if n >= 1 and opts.get("bar2"):
            if n % 2 == 1:
                post = []
                while nxt <= min(16, n + opts["bar2"]):
                    post += issue_kv(nxt); nxt += 1
                if len(post) > 0 and n <= 13:
                    st.place(first, post, 1, opts.get("dsp2", 1)); post = []
                st.bars[first] = (("KV", n + 1), post)
        elif n >= 1:
            kd = KD if n < opts.get("kswitch", 99) else opts["kvd2"]
            post = []
            while nxt <= min(16, n + kd) and len(post) < 8:
                post += issue_kv(nxt); nxt += 1
            if opts.get("late", 0):
                assert kd <= 3
                st.prebar[first] = lambda pre=post: [c() for c in pre]
                post = []
            if opts.get("dsp", 0) and len(post) <= 4 and n <= 15:
                st.place(first, post, 1, opts["dsp"]); post = []
            st.bars[first] = (("KV", n), post)
    st.start()
    for t in range(3):
        for k in range(2):
            e.valu(f"v_mov_b32 {vr(L[t][k])}, 0", w=[L[t][k]])
    def kseg(n): return 0 if n == 0 else 16 * n - 8
    def vseg(n): return 16 * n + 16 if n < 15 else 16 * 16 - 8
    assert vseg(15) == len(st.frags) - 8 and vseg(0) == 16 and kseg(1) == 8

    def sm_part(Sb, Lr, part):
        out = []
        b = Sb + 4 * part
        for r in range(4):
            out.append((lambda r=r: e.trans(f"v_exp_f32 {vr(b+r)}, {vr(b+r)}", w=[b+r], r=[b+r]), 2))
        seq = [out[0], out[1]]
        def add(r):
            return (lambda: e.valu(f"v_add_f32 {vr(Lr[r&1])}, {vr(Lr[r&1])}, {vr(b+r)}", w=[Lr[r&1]], r=[Lr[r&1], b+r]), 1)
        def cvt(k):
            d = Sb + 2 * part + k
            return (lambda: e.valu(f"v_cvt_pk_bf16_f32 {vr(d)}, {vr(b+2*k)}, {vr(b+2*k+1)}", w=[d], r=[b+2*k, b+2*k+1]), 1)
        seq += [add(0), out[2], add(1), out[3], cvt(0), add(2), add(3), cvt(1)]
        if "noadd" in EXP: seq = out + [cvt(0), cvt(1)]
        if "novalu" in EXP: seq = []
        if part == 0:
            pass
        return seq
    def first_max(Sb, t):
        m, tt = T + 5, T + 6
        e.valu(f"v_max3_f32 {vr(m)}, {vr(Sb)}, {vr(Sb+1)}, {vr(Sb+2)}", w=[m], r=[Sb, Sb+1, Sb+2])
        e.valu(f"v_max3_f32 {vr(m)}, {vr(m)}, {vr(Sb+3)}, {vr(Sb+4)}", w=[m], r=[m, Sb+3, Sb+4])
        e.valu(f"v_max3_f32 {vr(m)}, {vr(m)}, {vr(Sb+5)}, {vr(Sb+6)}", w=[m], r=[m, Sb+5, Sb+6])
        e.valu(f"v_max_f32 {vr(m)}, {vr(m)}, {vr(Sb+7)}", w=[m], r=[m, Sb+7])
        xlane_reduce(e, "v_max_f32", m, tt)
        lab = e.newlabel("SKIPM")
        e.salu(f"s_cmp_eq_u32 {sr(sMode)}, 1")
        e.raw(f"s_cbranch_scc1 {lab}")
        s0 = e.snapshot()
        for k in range(4):
            e.valu(f"v_sub_f32 {vr(NM[t]+k)}, 0, {vr(m)}", w=[NM[t]+k], r=[m])
        s1 = e.snapshot()
        e.label(lab)
        e.merge(s0, s1)
        for r in range(8):
            e.valu(f"v_add_f32 {vr(Sb+r)}, {vr(Sb+r)}, {vr(NM[t])}", w=[Sb+r], r=[Sb+r, NM[t]])

    def qk_seg(n, with2, spread):
        p = n & 1
        def uses(f, fr):
            k = f - kseg(n); t = k // 4; s = k % 4
            u = []
            for q in range(2):
                d = S[p][q] + 4*t
                c = (None if n == 0 else NM[q]) if s == 0 else d
                u.append(lambda d=d, c=c, q=q: e.mfma(d, fr, QF[q] + 4*s, c))
            if with2:
                d = S2 + 4*t
                c = (None if n < 4 else NM[2]) if s == 0 else d
                u.append(lambda d=d, c=c: e.mfma(d, fr, QF[2] + 4*s, c))
            return u
        mf, pinned = seg_from_stream(st, kseg(n), uses)
        emit_segment(e, mf, pinned, spread)
    def pv_seg(n, with2, spread):
        p = n & 1
        def uses(f, fr):
            i = f - vseg(n)
            u = []
            for q in range(2):
                d = OA[q] + 4*i
                u.append(lambda d=d, q=q: e.mfma(d, fr, S[p][q], None if n == 0 else d))
            if with2:
                d = O2 + 4*i
                u.append(lambda d=d: e.mfma(d, fr, S2, None if n < 4 else d))
            return u
        mf, pinned = seg_from_stream(st, vseg(n), uses)
        emit_segment(e, mf, pinned, spread)
    def sm2_block(n):
        if n < 4:
            first_max(S2, 2)
        for part in range(2):
            for c, _ in sm_part(S2, L[2], part): c()
    def interleave2(a, b):
        out = []
        for x, y in zip(a, b): out += [x, y]
        return out
    isw = lambda n: f"s_cmp_eq_u32 {sr(sW)}, {(n & 3) if 'not2' not in EXP else 77}"
    if "nobar" in EXP:
        _bar = e.barrier
        def nb(): e.s.epoch += 1
        e.barrier = nb
    e.variant(isw(0), lambda: qk_seg(0, True, []), lambda: qk_seg(0, False, []))
    for q in range(2): first_max(S[0][q], q)
    for n in range(16):
        p = n & 1
        sp0 = lambda: interleave2(sm_part(S[p][0], L[0], 0), sm_part(S[p][1], L[1], 0))
        sp1 = lambda: interleave2(sm_part(S[p][0], L[0], 1), sm_part(S[p][1], L[1], 1))
        if n >= 1:
            e.variant(isw(n - 1), lambda: pv_seg(n - 1, True, sp0()), lambda: pv_seg(n - 1, False, sp0()))
        else:
            for c, _ in sp0(): c()
        stamp(f"att{n}")
        if FUSED and n == opts.get("warmstep", 5) and opts.get("warm", 1): do_warm(SX, T + 3, T + 4)
        if opts.get("dummy") and n in (4, 6):
            srd(e, SWQ, 56, 57, 0x10000000)
            e.salu(f"s_lshl_b32 {sr(sT0)}, s2, 2")
            e.salu(f"s_add_u32 {sr(sT0)}, {sr(sT0)}, {sr(sW)}")
            e.salu(f"s_mul_i32 {sr(sT0)}, {sr(sT0)}, {opts['dummy'] * 2048}")
            e.salu(f"s_add_u32 {sr(sT0)}, {sr(sT0)}, {(136 << 20) + (n == 6) * opts['dummy'] * 1024}")
            e.valu(f"v_lshlrev_b32 {vr(T+3)}, 4, {vr(lane)}", w=[T+3], r=[lane])
            for k in range(opts["dummy"]):
                e.raw(f"buffer_load_dwordx4 {vr(T+4, 4)}, {vr(T+3)}, {sr(SWQ, 4)}, {sr(sT0)} offen{' nt' if opts.get('dummynt', 1) else ''}")
                e.s.vm.append((None, frozenset(R(T + 4, 4))))
                e.salu(f"s_add_u32 {sr(sT0)}, {sr(sT0)}, 1024")
        if L2F and n == 8:
            srd(e, SWQ, sDBG, sDBG + 1, 256)
            e.valu(f"v_mov_b32 {vr(T+3)}, 0", w=[T+3])
            e.buf_load(T + 4, 1, T + 3, SWQ, "0", flags=" sc1")
        if L2F and n == 10:
            e.valu(f"v_readfirstlane_b32 {sr(sRT)}, {vr(T+4)}", r=[T+4], kind="readlane", sw=[sRT])
            e.salu(f"s_cmp_lg_u32 {sr(sRT)}, 0", sr_=[sRT])
            e.raw("s_cbranch_scc1 NONCE_OK")
            st0 = e.snapshot()
            e.raw(f"s_mov_b32 {sr(sT1)}, 0")
            e.label("NONCE_LOOP")
            e.raw(f"buffer_load_dword {vr(T+4)}, {vr(T+3)}, {sr(SWQ, 4)}, 0 offen sc1")
            e.raw("s_waitcnt vmcnt(0)")
            e.raw(f"v_readfirstlane_b32 {sr(sRT)}, {vr(T+4)}")
            e.raw(f"s_add_u32 {sr(sT1)}, {sr(sT1)}, 1")
            e.raw("s_nop 3")
            e.raw(f"s_cmp_lg_u32 {sr(sRT)}, 0")
            e.raw("s_cbranch_scc1 NONCE_OK")
            e.raw("s_sleep 8")
            e.raw(f"s_cmp_lt_u32 {sr(sT1)}, 0x100000")
            e.raw("s_cbranch_scc1 NONCE_LOOP")
            e.label("NONCE_OK")
            e.restore(st0); e.s.t += 1
            srd(e, SWQ, 56, 57, 0x10000000)
            e.raw(f"s_getreg_b32 {sr(sXV)}, hwreg(HW_REG_XCC_ID, 0, 4)")
            e.salu(f"s_lshl_b32 {sr(sXV)}, {sr(sXV)}, 28")
            e.salu(f"s_xor_b32 {sr(sXV)}, {sr(sXV)}, {sr(sRT)}")
            e.salu(f"s_lshl_b32 {sr(sFast)}, {sr(sBr)}, 3")
            e.salu(f"s_add_u32 {sr(sFast)}, {sr(sFast)}, {sr(sB)}")
            e.salu(f"s_lshl_b32 {sr(sFast)}, {sr(sFast)}, 2")
            e.salu(f"s_add_u32 {sr(sFast)}, {sr(sFast)}, {sr(sHG)}")
            e.salu(f"s_lshl_b32 {sr(sFast)}, {sr(sFast)}, 6")
            e.salu(f"s_add_u32 {sr(sFast)}, {sr(sFast)}, {WS_F1 + 32768}")
            e.salu(f"s_lshl_b32 {sr(sT0)}, {sr(sHL)}, 2")
            e.salu(f"s_add_u32 {sr(sT0)}, {sr(sT0)}, {sr(sFast)}")
            e.valu(f"v_mov_b32 {vr(T+5)}, {sr(sXV)}", w=[T+5])
            e.salu(f"s_cmp_eq_u32 {sr(sW)}, 0")
            e.salu(f"s_cselect_b32 exec_lo, 1, 0")
            e.salu(f"s_mov_b32 exec_hi, 0")
            e.buf_store(T + 5, 1, T + 3, SWQ, sT0, flags=" sc1")
            set_exec_all(e)
        if opts.get("dyn") and n == 15:
            srd(e, SX, sDBG, sDBG + 1, 256)
            e.salu(f"s_lshl_b32 {sr(sT0)}, {sr(sBr)}, 2")
            e.salu(f"s_add_u32 {sr(sT0)}, {sr(sT0)}, {sr(sB)}")
            e.salu(f"s_lshl_b32 {sr(sT0)}, {sr(sT0)}, 2")
            e.salu(f"s_add_u32 {sr(sT0)}, {sr(sT0)}, {sr(sHG)}")
            e.salu(f"s_lshl_b32 {sr(sT0)}, {sr(sT0)}, 2")
            e.salu(f"s_sub_u32 {sr(sT0)}, {sr(sT0)}, {64 - 4}")
            e.valu(f"v_mov_b32 {vr(T+5)}, 1", w=[T+5])
            e.valu(f"v_mov_b32 {vr(T+6)}, 0", w=[T+6])
            e.salu(f"s_or_b32 {sr(sT1)}, {sr(sW)}, {sr(sMode)}")
            e.salu(f"s_cmp_eq_u32 {sr(sT1)}, 0")
            e.salu(f"s_cselect_b32 exec_lo, 1, 0")
            e.salu(f"s_mov_b32 exec_hi, 0")
            e.raw(f"buffer_atomic_add {vr(T+5)}, {vr(T+6)}, {sr(SX, 4)}, {sr(sT0)} offen sc0")
            e.s.vm.append(("ticket", frozenset([T+5])))
            set_exec_all(e)
        if L2F and n == 14:
            e.valu(f"v_and_b32 {vr(T+3)}, 7, {vr(lane)}", w=[T+3], r=[lane])
            e.valu(f"v_lshlrev_b32 {vr(T+3)}, 2, {vr(T+3)}", w=[T+3], r=[T+3])
            e.buf_load(T + 4, 1, T + 3, SWQ, sFast, flags=" sc1")
        if FUSED and not L2F and n == opts.get("noncestep", 8):
            NV = T + 4
            srd(e, SWQ, sDBG, sDBG + 1, 256)
            e.salu(f"s_or_b32 {sr(sRT)}, {sr(sRT)}, 1")
            e.valu(f"v_mov_b32 {vr(NV)}, {sr(sRT)}", w=[NV])
            e.valu(f"v_mov_b32 {vr(NV+1)}, 0", w=[NV+1])
            e.valu(f"v_mov_b32 {vr(T+3)}, 0", w=[T+3])
            e.salu(f"s_cmp_eq_u32 {sr(sW)}, 0")
            e.salu(f"s_cselect_b32 exec_lo, 1, 0")
            e.salu(f"s_mov_b32 exec_hi, 0")
            e.raw(f"buffer_atomic_cmpswap {vr(NV, 2)}, {vr(T+3)}, {sr(SWQ, 4)}, 0 offen sc0")
            e.s.vm.append(("nonce", frozenset([NV])))
            set_exec_all(e)
        e.variant(isw(n), lambda: sm2_block(n), lambda: None)
        if n + 1 <= 15:
            e.variant(isw(n + 1), lambda: qk_seg(n + 1, True, sp1()), lambda: qk_seg(n + 1, False, sp1()))
        else:
            for c, _ in sp1(): c()
    e.variant(isw(15), lambda: pv_seg(15, True, []), lambda: pv_seg(15, False, []))

    if "nobar" in EXP: e.barrier = _bar
    stamp("attend")
    if L2F:
        e.valu(f"v_cmp_ne_u32 vcc, {sr(sXV)}, {vr(T+4)}", r=[T+4], sw=["vcc"])
        e.salu(f"s_cmp_eq_u64 vcc, 0", sr_=["vcc"])
        e.salu(f"s_cselect_b32 {sr(38)}, 1, 0")
    elif FUSED:
        e.valu(f"v_readfirstlane_b32 {sr(sT0)}, {vr(T+4)}", r=[T+4], kind="readlane", sw=[sT0])
        e.salu(f"s_cmp_eq_u32 {sr(sT0)}, 0", sr_=[sT0])
        e.salu(f"s_cselect_b32 {sr(sRT)}, {sr(sRT)}, {sr(sT0)}")
    def ostore(src, vo, so):
        if L2F:
            e.variant(f"s_cmp_eq_u32 {sr(38)}, 0", lambda: e.buf_store(src, 4, vo, SO, so, flags=" sc1"), lambda: e.buf_store(src, 4, vo, SO, so, flags={1: "", 2: " nt", 3: " sc0", 4: " sc0 nt"}[L2F]))
        else:
            e.buf_store(src, 4, vo, SO, so, flags=OSF)
    OSF = {0: "", 1: " sc1", 2: " sc0 sc1", 3: " sc1 nt"}[opts.get("osf", 1)] if FUSED else ""
    assert FUSED
    tt = T + 6
    CA = [VREG_V, VREG_V + HS, VREG_K, VREG_K + HS]
    ML = VREG_V + 1 * HS
    e.salu(f"s_and_b32 {sr(sT0)}, {sr(sW)}, 1", sr_=[])
    e.salu(f"s_lshl_b32 {sr(sT0)}, {sr(sT0)}, 13")
    e.salu(f"s_lshr_b32 {sr(sT1)}, {sr(sW)}, 1")
    e.salu(f"s_mul_i32 {sr(sT1)}, {sr(sT1)}, {VREG_K}")
    e.salu(f"s_add_u32 {sr(sT0)}, {sr(sT0)}, {sr(sT1)}")
    e.valu(f"v_lshlrev_b32 {vr(t3)}, 4, {vr(lane)}", w=[t3], r=[lane])
    for t in range(3):
        e.valu(f"v_add_f32 {vr(L[t][0])}, {vr(L[t][0])}, {vr(L[t][1])}", w=[L[t][0]], r=L[t])
    AD = S[0][0]
    for s in range(4):
        e.salu(f"s_lshl_b32 {sr(sT1)}, {sr(sS+s)}, 5")
        e.salu(f"s_add_u32 {sr(sT1)}, {sr(sT1)}, {sr(sT0)}")
        e.valu(f"v_add_u32 {vr(AD+s)}, {sr(sT1)}, {vr(t3)}", w=[AD+s], r=[t3])
    tl = [S[0][1], S[0][1] + 1, S[0][1] + 2]
    for op in ("v_permlane16_swap_b32", "v_permlane32_swap_b32"):
        for t in range(3): e.valu(f"v_mov_b32 {vr(tl[t])}, {vr(L[t][0])}", w=[tl[t]], r=[L[t][0]])
        for t in range(3): e.valu(f"{op} {vr(L[t][0])}, {vr(tl[t])}", w=[L[t][0], tl[t]], r=[L[t][0], tl[t]], kind="permlane")
        for t in range(3): e.valu(f"v_add_f32 {vr(L[t][0])}, {vr(L[t][0])}, {vr(tl[t])}", w=[L[t][0]], r=[L[t][0], tl[t]])
    for s in range(4):
        rb = (VREG_V if s < 2 else VREG_K) + 2*HS + 8192*(s&1)
        e.ds_write("ds_write_b128", AD + s, O2 + 8*s, 4, 2 * HS, lds=(rb, rb + 4096))
        e.ds_write("ds_write_b128", AD + s, O2 + 8*s + 4, 4, 2 * HS + 1024, lds=(rb + 4096, rb + 8192))
    e.valu(f"v_mov_b32 {vr(S2)}, {vr(NM[2])}", w=[S2], r=[NM[2]])
    e.valu(f"v_mov_b32 {vr(S2+1)}, {vr(L[2][0])}", w=[S2+1], r=[L[2][0]])
    e.salu(f"s_lshl_b32 {sr(sT1)}, {sr(sW)}, 9")
    e.valu(f"v_lshlrev_b32 {vr(t4)}, 3, {vr(lane)}", w=[t4], r=[lane])
    e.valu(f"v_add_u32 {vr(tt)}, {sr(sT1)}, {vr(t4)}", w=[tt], r=[t4])
    e.ds_write("ds_write_b64", tt, S2, 2, ML, lds=(ML, ML + 2048))
    stamp("e1")
    VO = S[1][1]
    for s in range(4):
        e.salu(f"s_lshl_b32 {sr(sT0)}, {sr(sS+s)}, 4")
        e.valu(f"v_add_u32 {vr(VO+s)}, {sr(sT0)}, {vr(t3)}", w=[VO+s], r=[t3])
    if opts.get("ol"):
        e.salu(f"s_lshl_b32 {sr(sOoff)}, {sr(sBr)}, 3")
        e.salu(f"s_add_u32 {sr(sOoff)}, {sr(sOoff)}, {sr(sB)}")
        e.salu(f"s_lshl_b32 {sr(sOoff)}, {sr(sOoff)}, 5")
        e.salu(f"s_add_u32 {sr(sOoff)}, {sr(sOoff)}, {sr(sH)}")
        e.salu(f"s_mul_i32 {sr(sOoff)}, {sr(sOoff)}, 36864")
        e.salu(f"s_lshl_b32 {sr(sX)}, {sr(sW)}, 10")
        e.salu(f"s_add_u32 {sr(sX+1)}, {sr(sX)}, 512")
        e.salu(f"s_mov_b32 {sr(sX+2)}, {8*512}")
    else:
        e.salu(f"s_mul_i32 {sr(sOoff)}, {sr(sBr)}, {1152*8192}")
        e.salu(f"s_lshl_b32 {sr(sT0)}, {sr(sH)}, 12")
        e.salu(f"s_add_u32 {sr(sOoff)}, {sr(sOoff)}, {sr(sT0)}")
    RC = [S[1][0], S[1][0] + 2]
    ZF = S[1][0] + 4
    CK = FR
    for t in range(2):
        e.trans(f"v_rcp_f32 {vr(RC[t])}, {vr(L[t][0])}", w=[RC[t]], r=[L[t][0]])
    for k in range(4): e.valu(f"v_mov_b32 {vr(ZF+k)}, 0", w=[ZF+k])
    for t in range(2):
        e.valu(f"v_mov_b32 {vr(RC[t]+1)}, {vr(RC[t])}", w=[RC[t]+1], r=[RC[t]])
    def pack_pk(a, rc):
        for k in range(4):
            e.valu(f"v_pk_mul_f32 {vr(a+2*k, 2)}, {vr(a+2*k, 2)}, {vr(rc, 2)}", w=[a+2*k, a+2*k+1], r=[a+2*k, a+2*k+1, rc, rc+1])
        for k in range(4):
            e.valu(f"v_cvt_pk_bf16_f32 {vr(a+k)}, {vr(a+2*k)}, {vr(a+2*k+1)}", w=[a+k], r=[a+2*k, a+2*k+1])
    nck = 0
    for t in range(2):
        e.salu(f"s_lshl_b32 {sr(sT0)}, {sr(sX+t)}, 3")
        e.salu(f"s_add_u32 {sr(sT0)}, {sr(sT0)}, {sr(sOoff)}")
        for s in range(4):
            pack_pk(OA[t] + 8*s, RC[t])
            ostore(OA[t] + 8*s, VO + s, sT0)
            e.mfma(CK, ZF, OA[t] + 8*s, None if nck == 0 else CK); nck += 1
    stamp("e2")
    e.valu(f"v_pk_mul_f32 {vr(CK+4, 2)}, {vr(O2, 2)}, {vr(ZF, 2)}", w=[CK+4, CK+5], r=[O2, O2+1, ZF, ZF+1])
    for k in range(1, 16):
        e.valu(f"v_pk_fma_f32 {vr(CK+4, 2)}, {vr(O2+2*k, 2)}, {vr(ZF, 2)}, {vr(CK+4, 2)}", w=[CK+4, CK+5], r=[O2+2*k, O2+2*k+1, ZF, ZF+1, CK+4, CK+5])
    chk = CK + 4
    e.valu(f"v_add_f32 {vr(chk)}, {vr(chk)}, {vr(chk+1)}", w=[chk], r=[chk, chk+1])
    for t in range(3):
        e.valu(f"v_add_f32 {vr(chk)}, {vr(chk)}, {vr(L[t][0])}", w=[chk], r=[chk, L[t][0]])
    e.valu(f"v_add_f32 {vr(chk)}, {vr(chk)}, {vr(CK)}", w=[chk], r=[chk, CK])
    e.salu(f"s_mov_b32 {sr(sT0)}, {f32(2.0**30):#x}")
    e.valu(f"v_cmp_ngt_f32 vcc, {sr(sT0)}, {vr(chk)}", r=[chk], sw=["vcc"])
    e.salu(f"s_lshl_b32 {sr(sT1)}, {sr(sW)}, 2")
    e.valu(f"v_mov_b32 {vr(tt)}, {sr(sT1)}", w=[tt])
    e.salu(f"s_cmp_lg_u64 vcc, 0", sr_=["vcc"])
    e.salu(f"s_cselect_b32 {sr(sT0)}, 1, 0")
    e.valu(f"v_mov_b32 {vr(S2+2)}, {sr(sT0)}", w=[S2+2])
    e.ds_write("ds_write_b32", tt, S2 + 2, 1, ML + 2048, lds=(ML + 2048, ML + 2064))
    sTk = 39
    if opts.get("dyn"):
        e.valu(f"v_readfirstlane_b32 {sr(sT0)}, {vr(T+5)}", r=[T+5], kind="readlane", sw=[sT0])
        e.valu(f"v_mov_b32 {vr(S2+3)}, {sr(sT0)}", w=[S2+3], sr_=[sT0])
    else:
        e.valu(f"v_mov_b32 {vr(S2+3)}, {sr(sRT)}", w=[S2+3])
    e.ds_write("ds_write_b32", tt, S2 + 3, 1, ML + 2064, lds=(ML + 2064, ML + 2080))
    e.wait_all(vm=False)
    e.barrier()
    stamp("e3")
    FL = FR
    e.valu(f"v_mov_b32 {vr(tt)}, 0", w=[tt])
    e.ds_read("ds_read_b128", FL, 4, tt, ML + 2048, lds=(ML + 2048, ML + 2064))
    e.ds_read("ds_read_b32", FR + 16, 1, tt, ML + 2064, lds=(ML + 2064, ML + 2080))
    MLR = FR + 4
    for w in range(4):
        e.ds_read("ds_read_b64", MLR + 2*w, 2, t4, ML + 512 * w, lds=(ML, ML + 2048))
    PR = O2
    e.salu(f"s_add_u32 {sr(sT1)}, {sr(sW2048)}, {2*HS}")
    e.valu(f"v_add_u32 {vr(tt)}, {sr(sT1)}, {vr(t3)}", w=[tt], r=[t3])
    for w in range(4):
        e.ds_read("ds_read_b128", PR + 8*w, 4, tt, CA[w], lds=(CA[w] + 2*HS, CA[w] + 3*HS))
        e.ds_read("ds_read_b128", PR + 8*w + 4, 4, tt, CA[w] + 1024)
    e.valu(f"v_or3_b32 {vr(FL)}, {vr(FL)}, {vr(FL+1)}, {vr(FL+2)}", w=[FL], r=[FL, FL+1, FL+2])
    e.valu(f"v_or_b32 {vr(FL)}, {vr(FL)}, {vr(FL+3)}", w=[FL], r=[FL, FL+3])
    if opts.get("dyn"):
        e.valu(f"v_readfirstlane_b32 {sr(sT1)}, {vr(FR+16)}", r=[FR+16], kind="readlane", sw=[sT1])
        e.salu(f"s_cmp_eq_u32 {sr(sMode)}, 0", sr_=[sT1])
        e.salu(f"s_cselect_b32 {sr(sTk)}, {sr(sT1)}, {sr(sTk)}")
    else:
        e.valu(f"v_readfirstlane_b32 {sr(sRT)}, {vr(FR+16)}", r=[FR+16], kind="readlane", sw=[sRT])
    e.valu(f"v_readfirstlane_b32 {sr(sT0)}, {vr(FL)}", r=[FL], kind="readlane", sw=[sT0])
    e.salu(f"s_sub_u32 {sr(sT0)}, {sr(sT0)}, {sr(sMode)}", sr_=[sT0])
    e.salu(f"s_cmp_eq_u32 {sr(sT0)}, 1")
    e.raw("s_cbranch_scc1 K1_FALLBACK")
    fb_state = e.snapshot()
    nM = FR + 12
    e.valu(f"v_min3_f32 {vr(nM)}, {vr(MLR)}, {vr(MLR+2)}, {vr(MLR+4)}", w=[nM], r=[MLR, MLR+2, MLR+4])
    e.valu(f"v_min_f32 {vr(nM)}, {vr(nM)}, {vr(MLR+6)}", w=[nM], r=[nM, MLR+6])
    for w in range(4):
        e.valu(f"v_sub_f32 {vr(MLR+2*w)}, {vr(nM)}, {vr(MLR+2*w)}", w=[MLR+2*w], r=[nM, MLR+2*w])
    for w in range(4):
        e.trans(f"v_exp_f32 {vr(MLR+2*w)}, {vr(MLR+2*w)}", w=[MLR+2*w], r=[MLR+2*w])
    Lt = FR + 13
    e.valu(f"v_mul_f32 {vr(Lt)}, {vr(MLR)}, {vr(MLR+1)}", w=[Lt], r=[MLR, MLR+1])
    for w in range(1, 4):
        e.valu(f"v_fmac_f32 {vr(Lt)}, {vr(MLR+2*w)}, {vr(MLR+2*w+1)}", w=[Lt], r=[Lt, MLR+2*w, MLR+2*w+1])
    e.trans(f"v_rcp_f32 {vr(Lt)}, {vr(Lt)}", w=[Lt], r=[Lt])
    for k in range(8):
        e.valu(f"v_mul_f32 {vr(PR+k)}, {vr(MLR)}, {vr(PR+k)}", w=[PR+k], r=[MLR, PR+k])
        for w in range(1, 4):
            e.valu(f"v_fmac_f32 {vr(PR+k)}, {vr(MLR+2*w)}, {vr(PR+8*w+k)}", w=[PR+k], r=[PR+k, MLR+2*w, PR+8*w+k])
    pack_scaled(PR, PR, vr(Lt), scale_r=[Lt])
    e.salu(f"s_lshl_b32 {sr(sT0)}, {sr(sX+2)}, 3")
    e.salu(f"s_add_u32 {sr(sT0)}, {sr(sT0)}, {sr(sOoff)}")
    ostore(PR, VO + 0, sT0)
    if FUSED:
        stamp("epi")
        (phase_o2 if opts.get("dyn") else phase_o3 if opts.get("k512") else phase_o)(e, opts, stamp, dict(locals()))
    if opts.get("stamp", 0): e.wait_all()
    stamp("end"); stamp("rend", True)
    stamp.flush(56, sW, FR, SK)
    e.label("K1_END")
    e.raw("s_endpgm")
    e.restore(fb_state)
    e.label("K1_FALLBACK")
    e.wait_all(force=True)
    e.barrier()
    e.salu(f"s_mov_b32 {sr(sMode)}, 1")
    e.salu(f"s_mov_b32 {sr(sKoff)}, {sr(sItem)}")
    e.salu(f"s_mov_b32 {sr(sVoff)}, {sr(sItem)}")
    for n in range(FIRSTD):
        for c in issue_kv(n): c()
    VF = S[1][1]
    e.valu(f"v_lshlrev_b32 {vr(tt)}, 8, {vr(j)}", w=[tt], r=[j])
    e.valu(f"v_lshl_add_u32 {vr(tt)}, {vr(g)}, 4, {vr(tt)}", w=[tt], r=[g, tt])
    for s in range(4):
        e.valu(f"v_add_u32 {vr(VF+s)}, {sr(sS+s)}, {vr(tt)}", w=[VF+s], r=[tt])
    for t in range(3):
        e.valu(f"v_mov_b32 {vr(L[t][0])}, 0xff800000", w=[L[t][0]])
    e.salu(f"s_mov_b32 {sr(sT0)}, {sr(sItem)}")
    e.salu(f"s_add_u32 {sr(sT1)}, {sr(sItem)}, {512*256}")
    e.label("K1_FB_LOOP")
    for s in range(4):
        e.buf_load(FR + 4*s, 4, VF + s, SK, sT0)
    Sx = [S[0][0], S[0][0] + 4, S[0][1]]
    for s in range(4):
        for t in range(3):
            e.mfma(Sx[t], FR + 4*s, QF[t] + 4*s, None if s == 0 else Sx[t])
    for t in range(3):
        m = L[t][0]
        e.valu(f"v_max3_f32 {vr(m)}, {vr(m)}, {vr(Sx[t])}, {vr(Sx[t]+1)}", w=[m], r=[m, Sx[t], Sx[t]+1])
        e.valu(f"v_max3_f32 {vr(m)}, {vr(m)}, {vr(Sx[t]+2)}, {vr(Sx[t]+3)}", w=[m], r=[m, Sx[t]+2, Sx[t]+3])
    e.salu(f"s_add_u32 {sr(sT0)}, {sr(sT0)}, {16*256}")
    e.salu(f"s_cmp_lt_u32 {sr(sT0)}, {sr(sT1)}")
    e.nop(8)
    e.raw("s_cbranch_scc1 K1_FB_LOOP")
    for t in range(3):
        xlane_reduce(e, "v_max_f32", L[t][0], tt)
        for k in range(4):
            e.valu(f"v_sub_f32 {vr(NM[t]+k)}, 0, {vr(L[t][0])}", w=[NM[t]+k], r=[L[t][0]])
    e.wait_all(force=True)
    e.barrier()
    e.nop(8)
    e.raw("s_branch ATT_ENTRY")
    return e, nv

def gen_k2(opts):
    NSPL = opts.get("nsplit", 4)
    nk = 128 // NSPL
    nwg = 16 * 4 * NSPL
    e = Em()
    SX, SWO, SP = 4, 8, 12
    sW, sW2048, sWoff = 24, 25, 26
    sX = 29; sS = 32
    sBB, sN, sKs, sT0, sT1, sBr = 58, 59, 60, 61, 62, 63
    A = Alloc(0)
    O0 = A.get(32, 4); O1 = A.get(32, 4); O2 = A.get(8, 4)
    FR = A.get(32, 4)
    NXP = opts.get("k2_nxp", 10)
    XB = A.get(NXP * 8, 4)
    XS2 = A.get(8, 4)
    AW = [A.get(1) for _ in range(8)]
    VW0 = A.get(1); VW1 = A.get(1); VX = A.get(1)
    T = A.get(8)
    nv = A.n
    def XP(ks, t): return XB + ((ks % NXP) * 2 + t) * 4 if t < 2 else XS2 + 4 * (ks & 1)
    e.salu(f"s_cmp_ge_u32 s2, {nwg}")
    e.raw("s_cbranch_scc1 K2_END")
    e.raw("s_load_dwordx2 s[36:37], s[0:1], 32")
    e.raw("s_load_dwordx2 s[38:39], s[0:1], 72")
    e.raw("s_load_dwordx2 s[56:57], s[0:1], 96")
    stamp = Stamps(e, opts.get("stamp", 0))
    stamp("start"); stamp("rstart", True)
    lane, g, j = lane_setup(e, T, sW)
    e.salu(f"s_and_b32 {sr(sT0)}, s2, 7")
    e.salu(f"s_lshr_b32 {sr(sT1)}, s2, 3")
    e.salu(f"s_lshr_b32 {sr(sBr)}, {sr(sT0)}, 2")
    e.salu(f"s_and_b32 {sr(sKs)}, {sr(sT0)}, 3")
    e.salu(f"s_and_b32 {sr(sN)}, {sr(sT1)}, 3")
    e.salu(f"s_lshr_b32 {sr(sT1)}, {sr(sT1)}, 2")
    e.salu(f"s_and_b32 {sr(sBB)}, {sr(sT1)}, 7")
    if NSPL == 8:
        e.salu(f"s_lshr_b32 {sr(sT1)}, {sr(sT1)}, 3")
        e.salu(f"s_lshl_b32 {sr(sKs)}, {sr(sKs)}, 1")
        e.salu(f"s_add_u32 {sr(sKs)}, {sr(sKs)}, {sr(sT1)}")
    else:
        assert NSPL == 4
    e.salu(f"s_lshl_b32 {sr(sT0)}, {sr(sBr)}, 3")
    e.salu(f"s_add_u32 {sr(sBB)}, {sr(sBB)}, {sr(sT0)}")
    e.salu(f"s_lshl_b32 {sr(sW2048)}, {sr(sW)}, 11", sr_=[sW])
    for s in range(4):
        e.salu(f"s_add_u32 {sr(sS+s)}, {sr(sW)}, {s}")
        e.salu(f"s_and_b32 {sr(sS+s)}, {sr(sS+s)}, 3")
        e.salu(f"s_lshl_b32 {sr(sS+s)}, {sr(sS+s)}, 6")
    e.salu(f"s_mul_i32 {sr(sWoff)}, {sr(sKs)}, {nk*32*1024}")
    e.salu(f"s_lshl_b32 {sr(sT0)}, {sr(sN)}, 8")
    e.salu(f"s_add_u32 {sr(sWoff)}, {sr(sWoff)}, {sr(sT0)}")
    e.salu(f"s_mul_i32 {sr(sT0)}, {sr(sBB)}, 144")
    e.salu(f"s_lshl_b32 {sr(sT1)}, {sr(sW)}, 5")
    e.salu(f"s_add_u32 {sr(sX)}, {sr(sT0)}, {sr(sT1)}")
    e.salu(f"s_add_u32 {sr(sX+1)}, {sr(sX)}, 16")
    e.salu(f"s_add_u32 {sr(sX+2)}, {sr(sT0)}, 128")
    e.salu(f"s_mul_i32 {sr(sT0)}, {sr(sKs)}, {nk*1024}")
    for t in range(3):
        e.salu(f"s_lshl_b32 {sr(sX+t)}, {sr(sX+t)}, 13")
        e.salu(f"s_add_u32 {sr(sX+t)}, {sr(sX+t)}, {sr(sT0)}")
    rho = w_dma_chunk(e, T, g, j, sW, VW0)
    e.valu(f"v_lshl_add_u32 {vr(VW0)}, {vr(rho)}, 10, {vr(VW0)}", w=[VW0], r=[rho, VW0])
    e.valu(f"v_add_u32 {vr(VW1)}, {4*1024-1024}, {vr(VW0)}", w=[VW1], r=[VW0])
    e.valu(f"v_lshlrev_b32 {vr(VX)}, 4, {vr(lane)}", w=[VX], r=[lane])
    e.raw("s_waitcnt lgkmcnt(0)")
    e.salu(f"s_cmp_eq_u32 {sr(sBr)}, 1")
    srd_sel(e, SWO, 36, 38, 4096 * 512 * 2)
    srd(e, SX, 56, 57, 2 * 1152 * 4096 * 2)
    srd(e, SP, 56, 57, WS_P + nwg * 144 * 128 * 4)
    NSL = 3
    NB = nk // 2
    XSH = VREG_V + 3 * HS
    sRot, sWb, sEX, sXo = 64, 65, 68, 66
    K2F = " nt" if opts.get("k2nt", 0) else ""
    e.salu(f"s_lshl_b32 {sr(sRot)}, {sr(sBB)}, {1 if NB >= 16 else 0}")
    e.salu(f"s_mul_i32 {sr(sT0)}, {sr(sN)}, {5 if NB >= 16 else 3}")
    e.salu(f"s_add_u32 {sr(sRot)}, {sr(sRot)}, {sr(sT0)}")
    if not opts.get("k2rot", 1): e.salu(f"s_mov_b32 {sr(sRot)}, 0")
    e.salu(f"s_and_b32 {sr(sT1)}, {sr(sW)}, 1")
    e.salu(f"s_sub_u32 {sr(sEX+1)}, 0, {sr(sT1)}")
    e.salu(f"s_not_b32 {sr(sEX)}, {sr(sEX+1)}")
    e.salu(f"s_lshr_b32 {sr(sT0)}, {sr(sW)}, 1")
    e.salu(f"s_lshl_b32 {sr(67)}, {sr(sT0)}, 10")
    e.salu(f"s_add_u32 {sr(sX+2)}, {sr(sX+2)}, {sr(67)}")
    def issue_w(b):
        sl = b % NSL
        tg = ("W", b)
        out = []
        for h in range(2):
            base = (VREG_K if h == 0 else VREG_V) + sl * HS
            def c0(base=base, h=h):
                if h == 0:
                    e.salu(f"s_add_u32 {sr(sT0)}, {sr(sRot)}, {b}")
                    e.salu(f"s_and_b32 {sr(sT0)}, {sr(sT0)}, {NB-1}")
                    e.salu(f"s_lshl_b32 {sr(sWb)}, {sr(sT0)}, 16")
                    e.salu(f"s_add_u32 {sr(sWb)}, {sr(sWb)}, {sr(sWoff)}")
                    e.salu(f"s_lshl_b32 {sr(sT0)}, {sr(sT0)}, 11")
                    e.salu(f"s_add_u32 {sr(sT1)}, {sr(sT0)}, {sr(sX+2)}")
                e.salu(f"s_add_u32 m0, {sr(sW2048)}, {base}", m0=True)
                e.dma(VW0, SWO, sWb, 0, flags=K2F, tag=tg, lds=(base, base + 4096))
                e.dma(VW1, SWO, sWb, 1024, flags=K2F, tag=tg, lds=(base + 4096, base + 8192))
                if h == 0:
                    e.salu(f"s_add_u32 {sr(sWb)}, {sr(sWb)}, {32*1024}")
                    e.salu(f"s_add_u32 m0, {sr(67)}, {XSH + 2048*sl}", m0=True)
                    e.salu(f"s_mov_b64 exec, {sr(sEX, 2)}")
                    e.dma(VX, SX, sT1, 0, flags=K2F, tag=tg, lds=(XSH + 2048*sl, XSH + 2048*sl + 2048))
                    e.salu("s_mov_b64 exec, -1")
            out.append(c0)
        return out
    def load_x(ks, t):
        if t == 0:
            e.salu(f"s_add_u32 {sr(sXo)}, {sr(sRot)}, {ks//2}")
            e.salu(f"s_and_b32 {sr(sXo)}, {sr(sXo)}, {NB-1}")
            e.salu(f"s_lshl_b32 {sr(sXo)}, {sr(sXo)}, 11")
        e.salu(f"s_add_u32 s3, {sr(sXo)}, {sr(sX+t)}")
        e.buf_load(XP(ks, t), 4, VX, SX, 3, 0, flags=K2F)
        e.buf_load(XP(ks + 1, t), 4, VX, SX, 3, 1024, flags=K2F)
    def read_xs(ks):
        e.ds_read("ds_read_b128", XP(ks, 2), 4, VX, XSH + 2048 * ((ks // 2) % NSL) + 1024 * (ks & 1), lds=(XSH + 2048 * ((ks // 2) % NSL), XSH + 2048 * ((ks // 2) % NSL) + 2048))
    for c in issue_w(0): c()
    for t in range(2): load_x(0, t)
    for c in issue_w(1): c()
    for t in range(2): load_x(2, t)
    for c in issue_w(2): c()
    for ks in range(4, NXP, 2):
        for t in range(2): load_x(ks, t)
    w_addr_setup(e, T, g, j, AW, sS)
    st = Stream(e, FR)
    def post_w(b):
        nb = b + 2
        return [lambda: read_xs(2 * b)] + (issue_w(nb) if nb < NB else [])
    def spread2(ks):
        out = []
        if ks % 2 == 0:
            out.append((lambda: read_xs(ks + 1), 1))
            if ks >= 2 and ks - 2 + NXP < nk:
                for t in range(2):
                    out.append((lambda t=t, k=ks - 2 + NXP: load_x(k, t), 2))
        return out
    stamp("issued")
    gemm_phase(e, st, nk, AW, O0, O1, O2, XP, lambda b: b % NSL, post_w, spread2,
               after_first=lambda: read_xs(0), stamp=stamp)
    stamp("gemm")
    e.salu(f"s_lshl_b32 {sr(sT0)}, {sr(sKs)}, 4")
    e.salu(f"s_add_u32 {sr(sT0)}, {sr(sT0)}, {sr(sBB)}")
    e.salu(f"s_lshl_b32 {sr(sT0)}, {sr(sT0)}, 2")
    e.salu(f"s_add_u32 {sr(sT0)}, {sr(sT0)}, {sr(sN)}")
    e.salu(f"s_mul_i32 {sr(sT0)}, {sr(sT0)}, {9*8192}")
    e.salu(f"s_add_u32 {sr(sT0)}, {sr(sT0)}, {WS_P}")
    e.salu(f"s_lshl_b32 {sr(sT1)}, {sr(sW)}, 14")
    e.salu(f"s_add_u32 {sr(sX)}, {sr(sT0)}, {sr(sT1)}")
    e.salu(f"s_add_u32 {sr(sX+1)}, {sr(sX)}, 8192")
    e.salu(f"s_add_u32 {sr(sX+2)}, {sr(sT0)}, {8*8192}")
    t3 = T + 3
    VO = FR
    e.valu(f"v_lshlrev_b32 {vr(t3)}, 4, {vr(lane)}", w=[t3], r=[lane])
    for s in range(4):
        e.salu(f"s_lshl_b32 {sr(sT1)}, {sr(sS+s)}, 5")
        e.valu(f"v_add_u32 {vr(VO+s)}, {sr(sT1)}, {vr(t3)}", w=[VO+s], r=[t3])
    for t, acc in enumerate((O0, O1)):
        for i in range(8):
            e.buf_store(acc + 4*i, 4, VO + i // 2, SP, sX + t, 1024 * (i & 1))
    for i in range(2):
        e.buf_store(O2 + 4*i, 4, VO, SP, sX + 2, 1024 * i)
    if opts.get("stamp", 0): e.wait_all()
    stamp("end"); stamp("rend", True)
    stamp.flush(56, sW, FR + 8, SX)
    e.label("K2_END")
    e.raw("s_endpgm")
    return e, nv, nwg

def gen_k3(opts):
    NSPL = opts.get("nsplit", 4)
    nwg = 16 * 4 * 9
    e = Em()
    SP, SOUT = 4, 8
    e.salu(f"s_cmp_ge_u32 s2, {nwg}")
    e.raw("s_cbranch_scc1 K3_END")
    e.raw("s_load_dwordx2 s[20:21], s[0:1], 80")
    e.raw("s_load_dwordx2 s[22:23], s[0:1], 96")
    lane, g, j, t3, t4, va, vb, vo = 1, 2, 3, 4, 5, 6, 7, 8
    e.valu(f"v_lshrrev_b32 {vr(g)}, 4, v0", w=[g], r=[0])
    e.valu(f"v_and_b32 {vr(j)}, 15, v0", w=[j], r=[0])
    e.valu(f"v_and_b32 {vr(lane)}, 63, v0", w=[lane], r=[0])
    e.valu(f"v_lshrrev_b32 {vr(t3)}, 6, v0", w=[t3], r=[0])
    e.valu(f"v_lshlrev_b32 {vr(t3)}, 11, {vr(t3)}", w=[t3], r=[t3])
    e.valu(f"v_lshl_add_u32 {vr(t3)}, {vr(lane)}, 4, {vr(t3)}", w=[t3], r=[lane, t3])
    e.valu(f"v_and_b32 {vr(t4)}, 1, {vr(g)}", w=[t4], r=[g])
    e.valu(f"v_lshl_add_u32 {vr(va)}, {vr(t4)}, 10, {vr(t3)}", w=[va], r=[t4, t3])
    e.valu(f"v_xor_b32 {vr(vb)}, 0x400, {vr(va)}", w=[vb], r=[va])
    e.salu("s_mul_hi_u32 s12, s2, 0x1c71c71d")
    e.salu("s_mul_i32 s13, s12, 9")
    e.salu("s_sub_u32 s13, s2, s13")
    e.salu("s_and_b32 s14, s12, 3")
    e.salu("s_lshr_b32 s15, s12, 2")
    e.salu("s_lshl_b32 s16, s2, 13")
    e.salu(f"s_add_u32 s16, s16, {WS_P}")
    e.salu("s_and_b32 s17, s15, 7")
    e.salu("s_mul_i32 s17, s17, 144")
    e.salu("s_lshl_b32 s18, s13, 4")
    e.salu("s_add_u32 s17, s17, s18")
    e.salu("s_lshl_b32 s17, s17, 11")
    e.salu("s_lshr_b32 s18, s15, 3")
    e.salu("s_lshl_b32 s18, s18, 10")
    e.salu("s_add_u32 s17, s17, s18")
    e.salu("s_lshl_b32 s18, s14, 8")
    e.salu("s_add_u32 s17, s17, s18")
    e.valu(f"v_lshlrev_b32 {vr(vo)}, 11, {vr(j)}", w=[vo], r=[j])
    e.valu(f"v_lshl_add_u32 {vr(vo)}, {vr(g)}, 4, {vr(vo)}", w=[vo], r=[g, vo])
    e.raw("s_waitcnt lgkmcnt(0)")
    srd(e, SP, 22, 23, WS_P + 64 * NSPL * 144 * 128 * 4)
    srd(e, SOUT, 20, 21, 8 * 144 * 1024 * 2)
    D = 12
    for k in range(NSPL):
        e.buf_load(D + 8*k, 4, va, SP, 16)
        e.buf_load(D + 8*k + 4, 4, vb, SP, 16)
        if k + 1 < NSPL:
            e.salu(f"s_add_u32 s16, s16, {64*9*8192}")
    for k in range(1, NSPL):
        for r in range(8):
            e.valu(f"v_add_f32 {vr(D+r)}, {vr(D+r)}, {vr(D+8*k+r)}", w=[D+r], r=[D+r, D+8*k+r])
    for k in range(4):
        e.valu(f"v_cvt_pk_bf16_f32 {vr(D+k)}, {vr(D+2*k)}, {vr(D+2*k+1)}", w=[D+k], r=[D+2*k, D+2*k+1])
    e.buf_store(D, 4, vo, SOUT, 17)
    e.label("K3_END")
    e.raw("s_endpgm")
    return e, D + 8 * NSPL, nwg

def header():
    ref = open(f"cdna_kernels/{NAME}.s.ref").read().splitlines()
    out = []
    for l in ref:
        if l.startswith("; Override") or "@launch" in l or l.startswith("; grid="):
            continue
        if not l.startswith(";"): break
        out.append(l)
    return "\n".join(out) + "\n"

def build(opts, path):
    Stream.MERGE = opts.get("merge", 0)
    e1, nv1 = gen_k1(opts)
    if any(k.startswith("a_") or k.startswith("b_") for k in opts):
        import re
        oa = dict(opts); ob = dict(opts)
        for k, v in opts.items():
            if k.startswith("a_"): oa[k[2:]] = v
            if k.startswith("b_"): ob[k[2:]] = v
        ea, _ = gen_k1(oa); eb, _ = gen_k1(ob)
        head = "    s_cmp_ge_u32 s2, 512\n    s_cbranch_scc1 K1_END\n"
        ta = ea.text(); tb = eb.text()
        assert ta.startswith(head) and tb.startswith(head)
        ta = head + ("    s_bitcmp0_b32 s2, 2\n" if opts.get("splitbr") else "    s_cmp_lt_u32 s2, 256\n") + "    s_cbranch_scc1 NOTB\n    s_getpc_b64 s[4:5]\nPCB:\n    s_add_u32 s4, s4, BSTART-PCB\n    s_addc_u32 s5, s5, 0\n    s_setpc_b64 s[4:5]\nNOTB:\n" + ta[len(head):]
        labs = set(re.findall(r"^(\w+):", tb, re.M))
        tb = re.sub(r"\b(" + "|".join(sorted(labs)) + r")\b", r"B\1", tb[len(head):])
        class X:
            cnt = {}; lines = ea.lines; cold = ea.cold
            def text(self): return ta + ".p2align 6\nBSTART:\n" + tb
        e1 = X()
    txt = header()
    if opts.get("fused"):
        txt += "; @launch grid=(512,1,1) block=(256,1,1) lds=81920\n"
        txt += '.amdgcn_target "amdgcn-amd-amdhsa--gfx950"\n'
        txt += kernel_wrap(NAME + "_kernel", e1.text(), nv1)
        open(path, "w").write(txt)
        print("fused vgpr", nv1, "lines", len(e1.lines), len(e1.cold))
        return
    e2, nv2, nwg2 = gen_k2(opts)
    e3, nv3, nwg3 = gen_k3(opts)
    ks = opts.get("kernels", "123")
    if "1" in ks: txt += f"; @launch kernel=attn_kernel grid=(512,1,1) block=(256,1,1) lds=81920\n"
    if "2" in ks: txt += f"; @launch kernel=oproj_kernel grid=({nwg2},1,1) block=(256,1,1) lds=81920\n"
    if "3" in ks: txt += f"; @launch kernel=reduce_kernel grid=({nwg3},1,1) block=(256,1,1) lds=0\n"
    txt += '.amdgcn_target "amdgcn-amd-amdhsa--gfx950"\n'
    txt += kernel_wrap("attn_kernel", e1.text(), nv1)
    txt += kernel_wrap("oproj_kernel", e2.text(), nv2)
    txt += kernel_wrap("reduce_kernel", e3.text(), nv3, 32)
    open(path, "w").write(txt)
    print("k1 vgpr", nv1, "counts", {k: v for k, v in e1.cnt.items() if v > 20})
    print("k2 vgpr", nv2, "k3 vgpr", nv3)

if __name__ == "__main__":
    opts = dict(fused=1, prio=3, kvd=2, warm=1, orot=2, nxb=2, onsl=3)
    path = f"cdna_kernels/{NAME}.s"
    for a in sys.argv[1:]:
        if "=" in a:
            k, v = a.split("=")
            opts[k] = int(v) if v.lstrip("-").isdigit() and k != "kernels" else v
        else:
            path = a
    build(opts, path)
```
